```python
import torch

def _softmax(x, axis=-1):
    return torch.softmax(x, dim=axis)
def _gelu(x):
    return torch.nn.functional.gelu(x, approximate="tanh")
def _silu(x):
    return torch.nn.functional.silu(x)
def _sigmoid(x):
    return torch.sigmoid(x)
def _layernorm(x, axis=-1, eps=1e-5):
    m = x.mean(dim=axis, keepdim=True)
    v = x.var(dim=axis, keepdim=True, unbiased=False)
    return (x - m) / torch.sqrt(v + eps)
def _scatter_add(tgt, idx, src, axis=0):
    return tgt.clone().index_add_(axis, idx, src)
def _segment_sum(src, seg, n):
    out = torch.zeros((n,) + src.shape[1:], dtype=src.dtype)
    return out.index_add_(0, seg, src)
def _pad(x, pw):
    flat = tuple(v for pair in reversed(pw) for v in pair)
    return torch.nn.functional.pad(x, flat)

kernel_name = 'gated_mix__linear_kernel_hedgehog__dense_activation_relu__prompt'

def setup_inputs():

    _w = (lambda a: (lambda t: t.to(torch.bfloat16) if t.is_floating_point() else t)(torch.as_tensor(a)))
    def _A_setup():
        B, S, D, H = 1, 2048, 512, 32
        Dh = D // H
        return {
            "x": _w((lambda *s: torch.randn(*s, dtype=torch.bfloat16) * 0.05)(B, S, D)),
            "wqkv": _w((lambda *s: torch.randn(*s, dtype=torch.bfloat16) * 0.8)(D, 3 * D)),
            "w_phi": _w((lambda *s: torch.randn(*s, dtype=torch.bfloat16) * 0.8)(H, Dh, Dh) * (Dh ** -0.5)),
            "wo": _w((lambda *s: torch.randn(*s, dtype=torch.bfloat16) * 0.2)(D, D)),
        }
    _A_in = _A_setup()

    def _B_setup():
        B, S, D, Dff = 1, 2048, 512, 1792
        return {
            "x": _w((lambda *s: torch.randn(*s, dtype=torch.bfloat16) * 0.05)(B, S, D)),
            "w1": _w((lambda *s: torch.randn(*s, dtype=torch.bfloat16) * 0.05)(D, Dff)),
            "w2": _w((lambda *s: torch.randn(*s, dtype=torch.bfloat16) * 0.05)(Dff, D)),
        }
    _B_in = _B_setup()

    return {
        "A_x": _A_in["x"],
        "A_wqkv": _A_in["wqkv"],
        "A_w_phi": _A_in["w_phi"],
        "A_wo": _A_in["wo"],
        "B_x": _B_in["x"],
        "B_w1": _B_in["w1"],
        "B_w2": _B_in["w2"],
        "gate_w": _w((lambda *s: torch.randn(*s, dtype=torch.bfloat16) * 0.05)(512) * 16.0),
    }

def reference(A_x, A_wqkv, A_w_phi, A_wo, B_x, B_w1, B_w2, gate_w):
    def _A_ref(x, wqkv, w_phi, wo):
        B, S, D = x.shape
        H = 32; Dh = D // H
        qkv = (lambda x, *d: x.permute(*d))((x @ wqkv).reshape(B, S, 3, H, Dh), 2, 0, 3, 1, 4)
        q, k, v = qkv[0], qkv[1], qkv[2]
        pq = torch.einsum("bhsd,hdf->bhsf", q, w_phi)
        pk = torch.einsum("bhsd,hdf->bhsf", k, w_phi)
        phi_q = torch.concatenate([_softmax(pq, axis=-1), _softmax(-pq, axis=-1)], axis=-1)
        phi_k = torch.concatenate([_softmax(pk, axis=-1), _softmax(-pk, axis=-1)], axis=-1)
        kv = torch.einsum("bhsf,bhsd->bhfd", phi_k, v)
        z  = torch.einsum("bhsf->bhf", phi_k)
        num = torch.einsum("bhqf,bhfd->bhqd", phi_q, kv)
        den = torch.einsum("bhqf,bhf->bhq", phi_q, z)[..., None] + 1e-6
        o = num / den
        return (lambda x, *d: x.permute(*d))(o, 0, 2, 1, 3).reshape(B, S, D) @ wo

    def _B_ref(x, w1, w2):
        h = torch.einsum("bsd,df->bsf", x, w1)
        zero = torch.zeros_like(h)
        h = torch.maximum(h, zero)
        return torch.einsum("bsf,fd->bsd", h, w2)

    x = A_x
    g = _sigmoid((x * gate_w).sum(-1, keepdims=True))
    a = _A_ref(x, A_wqkv, A_w_phi, A_wo)
    b = _B_ref(x, B_w1, B_w2)
    return g * a + (1 - g) * b
```

```python
import re

_REG = re.compile(r"(?<![\w\[])(?:([vs])\[(\d+):(\d+)\]|([vs])(\d+)\b|(vcc|exec|m0)(_lo|_hi)?\b)")
TRANS = ("v_exp_f32", "v_log_f32", "v_rcp_f32", "v_rsq_f32", "v_sqrt_f32", "v_sin_f32", "v_cos_f32")


def regs_of(tok):
    out = set()
    for m in _REG.finditer(tok):
        if m.group(1):
            for i in range(int(m.group(2)), int(m.group(3)) + 1):
                out.add((m.group(1), i))
        elif m.group(4):
            out.add((m.group(4), int(m.group(5))))
        else:
            out.add((m.group(6), 0))
    return out


def split_ops(s):
    ops, depth, cur = [], 0, ""
    for ch in s + ",":
        if ch in "[(":
            depth += 1
        elif ch in "])":
            depth -= 1
        if ch == "," and depth == 0:
            ops.append(cur.strip())
            cur = ""
        else:
            cur += ch
    return [o for o in ops if o]


class Ins:
    __slots__ = ("text", "mn", "cls", "w", "r", "srcc", "srcab", "passes", "pos", "wide", "lds_dma", "dstart")

    def __init__(self, text):
        self.text = text
        parts = text.split(None, 1)
        self.mn = mn = parts[0]
        rest = parts[1] if len(parts) > 1 else ""
        ops = split_ops(rest)
        self.w, self.r = set(), set()
        self.srcc, self.srcab = set(), set()
        self.passes = 0
        self.wide = False
        self.lds_dma = False
        self.dstart = None
        if mn.startswith("v_mfma"):
            self.cls = "mfma"
            self.passes = 8 if "32x32" in mn else 4
            self.w = regs_of(ops[0])
            self.srcab = regs_of(ops[1]) | regs_of(ops[2])
            self.srcc = regs_of(ops[3])
            self.r = self.srcab | self.srcc
        elif mn.startswith("v_"):
            self.cls = "trans" if mn.startswith(TRANS) else "valu"
            self.w = regs_of(ops[0])
            for o in ops[1:]:
                self.r |= regs_of(o)
            if mn.startswith(("v_fmac", "v_permlane", "v_pk_fmac", "v_dot2c")):
                self.r |= self.w
            if mn.startswith("v_permlane"):
                self.w |= regs_of(ops[1])
            if mn.startswith("v_cndmask") and len(ops) == 3:
                self.r.add(("vcc", 0))
            if mn.startswith(("v_add_co", "v_addc_co", "v_sub_co")):
                self.w |= regs_of(ops[1])
        elif mn.startswith("ds_"):
            self.cls = "ds"
            if mn.startswith("ds_read") or mn.startswith("ds_bpermute") or mn.startswith("ds_swizzle"):
                self.w = regs_of(ops[0])
                for o in ops[1:]:
                    self.r |= regs_of(o)
            else:
                for o in ops:
                    self.r |= regs_of(o)
        elif mn.startswith(("buffer_", "global_")):
            self.cls = "vmem"
            if re.search(r"\blds\b", rest) or "_lds_" in mn:
                self.lds_dma = True
                for o in ops:
                    self.r |= regs_of(o)
                self.r.add(("m0", 0))
            elif "_load" in mn:
                self.w = regs_of(ops[0])
                for o in ops[1:]:
                    self.r |= regs_of(o)
            else:
                for o in ops:
                    self.r |= regs_of(o)
                if "x4" in mn or "x3" in mn:
                    self.wide = True
                    self.dstart = regs_of(ops[0] if mn.startswith("buffer_") else ops[1])
        else:
            self.cls = "salu"
            if mn.startswith(("s_cmp", "s_bitcmp", "s_waitcnt", "s_barrier", "s_nop", "s_sleep", "s_branch", "s_cbranch",
                              "s_endpgm", "s_setprio")):
                for o in ops:
                    self.r |= regs_of(o)
            else:
                if ops:
                    self.w = regs_of(ops[0])
                for o in ops[1:]:
                    self.r |= regs_of(o)


def need(p, c):
    n = 0
    vw = {x for x in p.w if x[0] == "v"}
    sw = {x for x in p.w if x[0] != "v"}
    if p.cls in ("valu", "trans"):
        if c.cls == "mfma" and vw & c.r:
            n = max(n, 2)
        if p.cls == "trans" and c.cls == "valu" and vw & c.r:
            n = max(n, 1)
        if c.mn.startswith(("v_readfirstlane", "v_readlane")) and vw & c.r:
            n = max(n, 1)
        if c.mn.startswith("v_permlane") and vw & c.r:
            n = max(n, 2)
        if "dpp" in c.text or "row_" in c.text or "quad_perm" in c.text:
            if vw & c.r:
                n = max(n, 2)
        if sw:
            if c.cls in ("valu", "trans") and sw & c.r:
                n = max(n, 2)
            if c.cls == "vmem" and sw & c.r:
                n = max(n, 5)
            if c.cls == "salu" and sw & c.r:
                n = max(n, 1)
            if ("exec", 0) in sw and c.cls == "mfma":
                n = max(n, 4)
    if p.cls == "mfma":
        big = 12 if p.passes == 8 else 8
        if c.cls == "mfma":
            if p.w & c.srcab:
                n = max(n, big)
            if p.w & c.srcc and not (p.w == c.srcc and p.passes == c.passes):
                n = max(n, big - 2)
            if p.w & c.w and not (p.w == c.srcc):
                n = max(n, big - 2)
        elif c.cls in ("valu", "trans", "vmem", "ds"):
            if p.w & (c.r | c.w):
                n = max(n, big)
            if c.cls in ("valu", "trans") and p.srcc & c.w:
                n = max(n, 7 if p.passes == 8 else 3)
    if p.cls == "salu" and ("m0", 0) in p.w and c.lds_dma:
        n = max(n, 1)
    if p.wide and p.dstart & c.w:
        n = max(n, 2)
    return n


class Prog:
    def __init__(self, name):
        self.name = name
        self.lines = []
        self.hist = []
        self.pos = 0
        self.nbar = 0
        self.vm = []
        self.nops = 0

    def raw(self, text):
        self.lines.append(text)

    def comment(self, text):
        self.lines.append("    ; " + text)

    def e(self, text, tag=None):
        ins = Ins(text)
        req = 0
        for p in self.hist:
            d = self.pos - p.pos - 1
            n = need(p, ins)
            if n > d:
                req = max(req, n - d)
        while req > 0:
            k = min(req, 16)
            self.lines.append(f"    s_nop {k-1}")
            self.pos += k
            self.nops += k
            req -= k
        ins.pos = self.pos
        if ins.mn == "s_nop":
            self.pos += int(text.split()[1]) + 1
        else:
            self.pos += 1
        self.hist.append(ins)
        self.hist = [h for h in self.hist if self.pos - h.pos <= 14]
        self.lines.append("    " + text)
        if ins.cls == "vmem" and not ins.mn.startswith(("buffer_inv", "buffer_wbl2")):
            self.vm.append(tag)
        if ins.mn == "s_barrier":
            self.nbar += 1

    def fence(self):
        worst = 0
        for p in self.hist:
            d = self.pos - p.pos - 1
            if p.cls == "mfma":
                worst = max(worst, (12 if p.passes == 8 else 8) - d)
            elif p.cls in ("valu", "trans"):
                worst = max(worst, (5 if any(x[0] != "v" for x in p.w) else 2) - d)
            elif p.wide:
                worst = max(worst, 2 - d)
            elif p.cls == "salu" and ("m0", 0) in p.w:
                worst = max(worst, 1 - d)
        if worst > 0:
            self.e(f"s_nop {worst-1}")
        self.hist = []

    def label(self, name):
        self.fence()
        self.lines.append(f"{name}:")

    def wait_vm(self, tags):
        if not isinstance(tags, (set, list, tuple)):
            tags = [tags]
        tags = set(tags)
        last = -1
        for i, t in enumerate(self.vm):
            if t in tags:
                last = i
        for t in tags:
            assert t in self.vm or t in getattr(self, "done", set()), f"{self.name}: waiting for never-issued tag {t}"
        if last < 0:
            return
        n = len(self.vm) - 1 - last
        n = min(n, 63)
        self.e(f"s_waitcnt vmcnt({n})")
        if not hasattr(self, "done"):
            self.done = set()
        keep = len(self.vm) - n
        self.done |= set(self.vm[:keep])
        self.vm = self.vm[keep:]

    def wait_vm0(self):
        self.e("s_waitcnt vmcnt(0)")
        if not hasattr(self, "done"):
            self.done = set()
        self.done |= set(self.vm)
        self.vm = []

    def text(self):
        return "\n".join(self.lines)


def vr(a, n=1):
    return f"v{a}" if n == 1 else f"v[{a}:{a+n-1}]"


def sr(a, n=1):
    return f"s{a}" if n == 1 else f"s[{a}:{a+n-1}]"


def interleave(main, fill, per_gap):
    out = []
    fi = 0
    for i, m in enumerate(main):
        out.append(m)
        k = per_gap[i] if isinstance(per_gap, (list, tuple)) and i < len(per_gap) else (per_gap if isinstance(per_gap, int) else 0)
        out += fill[fi:fi + k]
        fi += k
    out += fill[fi:]
    return out
```

```python
import sys
from asmlib import Prog, vr, sr, interleave

KNAME = "gated_mix__linear_kernel_hedgehog__dense_activation_relu__prompt_kernel"

class Cfg:
    rotR = 2
    Y1 = 6
    Y2 = 4
    Alead = 4
    stamps = False
    code_prefetch = True
    p2_prefetch = True
    pk = True

ACT = 0
KVP = 0x900000
GP = 0x9A0000
FL = 0x9C0000
F1, F2, F3, FK = FL, FL + 0x1000, FL + 0x2000, FL + 0x3000
STAMPS = 0xA00000
WS_SIZE = 0xB00000
RING = 131072

S_WAVE, S_M, S_ROLE, S_UNIT, S_ROT, S_MM, S_NN, S_LW = 3, 4, 5, 6, 7, 8, 9, 10
S_T0, S_T1, S_T2, S_T3 = 11, 12, 13, 14
S_NONCE = 15
P_X, P_WQKV, P_WPHI, P_WO, P_BX, P_W1, P_W2, P_GATE, P_OUT, P_DBG, P_WS = 16, 18, 20, 22, 24, 26, 28, 30, 32, 34, 36
S_L2E = 38
SX, SW1, SW2, SWO, SWS, SOUT, SPHI = 40, 44, 48, 52, 56, 60, 64
S_KX = 68
S_KW = 76
S_C = 68
S_STAMP = 84
S_CNT = 100
S_T4 = 101

LINE_ORDER = [7 * i + r for i in range(4) for r in (0, 1, 4, 5)] + [7 * i + r for i in range(4) for r in (2, 3, 6)] + [28 + i for i in range(8)]
assert len(LINE_ORDER) == 36

MF = "v_mfma_f32_32x32x16_bf16"


def mfma(d, a, b, c):
    cs = "0" if c is None else vr(c, 16)
    return f"{MF} {vr(d,16)}, {vr(a,4)}, {vr(b,4)}, {cs}"


class G:
    def __init__(self, cfg):
        self.c = cfg
        self.uid = 0

    def lab(self, s):
        self.uid += 1
        return f"L_{s}_{self.uid}"

    def stamp(self, p, i):
        if self.c.stamps:
            p.e(f"s_memrealtime {sr(S_STAMP + 2 * i, 2)}")

    def stamps_out(self, p, n, vtmp):
        if not self.c.stamps:
            return
        p.e("s_waitcnt lgkmcnt(0)")
        for i in range(8):
            p.e(f"v_mov_b32 v{vtmp+i}, s{S_STAMP + 2*i if i < n else S_STAMP}")
        p.e(f"s_lshl_b32 s{S_T0}, s2, 3")
        p.e(f"s_add_u32 s{S_T0}, s{S_T0}, s{S_WAVE}")
        p.e(f"s_lshl_b32 s{S_T0}, s{S_T0}, 5")
        p.e(f"s_add_u32 s{S_T0}, s{S_T0}, {STAMPS}")
        p.e("s_mov_b64 exec, 1")
        p.e(f"buffer_store_dwordx4 {vr(vtmp,4)}, off, {sr(SWS,4)}, s{S_T0}")
        p.e(f"buffer_store_dwordx4 {vr(vtmp+4,4)}, off, {sr(SWS,4)}, s{S_T0} offset:16")
        p.e("s_mov_b64 exec, -1")

    def prologue(self):
        p = Prog("pro")
        c = self.c
        p.e("s_cmp_ge_u32 s2, 256")
        p.e("s_cbranch_scc1 L_exit")
        p.e(f"s_load_dwordx16 s[16:31], s[0:1], 0")
        p.e(f"s_load_dwordx4 s[32:35], s[0:1], 64")
        p.e(f"s_load_dwordx2 s[36:37], s[0:1], 80")
        self.stamp(p, 0)
        p.e("v_lshrrev_b32 v1, 6, v0")
        p.e("v_and_b32 v0, 63, v0")
        p.e(f"v_readfirstlane_b32 s{S_WAVE}, v1")
        p.e(f"s_and_b32 s{S_T0}, s2, 7")
        p.e(f"s_lshr_b32 s{S_T1}, s2, 3")
        p.e(f"s_and_b32 s{S_M}, s{S_T0}, 1")
        p.e(f"s_lshl_b32 s{S_M}, s{S_M}, 3")
        p.e(f"s_and_b32 s{S_NN}, s{S_T1}, 7")
        p.e(f"s_add_u32 s{S_M}, s{S_M}, s{S_NN}")
        p.e(f"s_lshr_b32 s{S_T2}, s{S_T1}, 3")
        p.e(f"s_lshr_b32 s{S_ROLE}, s{S_T2}, 1")
        p.e(f"s_and_b32 s{S_UNIT}, s{S_T0}, 6")
        p.e(f"s_and_b32 s{S_T3}, s{S_T2}, 1")
        p.e(f"s_add_u32 s{S_UNIT}, s{S_UNIT}, s{S_T3}")
        p.e(f"s_lshl_b32 s{S_MM}, s{S_T0}, 2")
        p.e(f"s_add_u32 s{S_MM}, s{S_MM}, s{S_T2}")
        p.e(f"s_add_u32 s{S_ROT}, s{S_M}, s{S_T2}")
        p.e(f"s_and_b32 s{S_ROT}, s{S_ROT}, {c.rotR-1}")
        p.e(f"s_mul_i32 s{S_ROT}, s{S_ROT}, {8//c.rotR}")
        p.e(f"s_and_b32 s{S_LW}, s{S_WAVE}, 3")
        p.e(f"s_mov_b32 s{S_L2E}, 0x3fb8aa3b")
        p.e(f"s_mov_b32 s{S_L2E+1}, 0x3fb8aa3b")
        for s in (SX, SW1, SW2, SWO, SWS, SOUT, SPHI):
            p.e(f"s_mov_b32 s{s+3}, 0x20000")
        p.e(f"s_mov_b32 s{SX+2}, {2048*1024}")
        p.e(f"s_mov_b32 s{SW2+2}, {1792*1024}")
        p.e(f"s_mov_b32 s{SWO+2}, {512*1024}")
        p.e(f"s_mov_b32 s{SWS+2}, {WS_SIZE}")
        p.e(f"s_mov_b32 s{SOUT+2}, {2048*1024}")
        p.e(f"s_mov_b32 s{SPHI+2}, {32*512}")
        p.e(f"s_cmp_eq_u32 s{S_ROLE}, 0")
        p.e(f"s_mov_b32 s{SW1+2}, {512*3072}")
        p.e(f"s_cselect_b32 s{SW1+2}, s{SW1+2}, {512*3584}")
        p.e("s_waitcnt lgkmcnt(0)")
        p.e(f"s_cselect_b32 s{SW1}, s{P_WQKV}, s{P_W1}")
        p.e(f"s_cselect_b32 s{SW1+1}, s{P_WQKV+1}, s{P_W1+1}")
        for s, q in ((SX, P_X), (SW2, P_W2), (SWO, P_WO), (SWS, P_WS), (SOUT, P_OUT), (SPHI, P_WPHI)):
            p.e(f"s_mov_b32 s{s}, s{q}")
            p.e(f"s_mov_b32 s{s+1}, s{q+1}")
        p.e(f"s_cmp_ge_u32 s{S_WAVE}, 4")
        p.e("s_cbranch_scc1 L_loader")
        p.e(f"s_cmp_eq_u32 s{S_ROLE}, 0")
        p.e("s_cbranch_scc1 L_comp_attn")
        p.e("s_branch L_comp_ffn")
        p.raw("L_loader:")
        p.e(f"s_cmp_eq_u32 s{S_ROLE}, 0")
        p.e("s_cbranch_scc1 L_load_attn")
        p.e("s_branch L_load_ffn")
        p.raw("L_exit:")
        p.e("s_endpgm")
        return p

    def ffn_cols(self, p, s_c1, s_c2, s_c3):
        p.e(f"s_mul_i32 s{S_T0}, s{S_UNIT}, 224")
        p.e(f"s_bitcmp1_b32 s{S_UNIT}, 0")
        p.e(f"s_cselect_b32 s{s_c1}, 32, 0")
        p.e(f"s_cselect_b32 s{s_c3}, 0, 192")
        p.e(f"s_add_u32 s{s_c1}, s{s_c1}, s{S_T0}")
        p.e(f"s_add_u32 s{s_c2}, s{s_c1}, 128")
        p.e(f"s_add_u32 s{s_c3}, s{s_c3}, s{S_T0}")

    def build_sel(self, p, vsel, t0, t1, t2):
        p.e(f"v_and_b32 v{t0}, 1, v0")
        p.e(f"v_lshlrev_b32 v{t0}, 4, v{t0}")
        p.e(f"v_mov_b32 v{t1}, 0x3f80")
        p.e(f"v_lshlrev_b32 v{t0}, v{t0}, v{t1}")
        p.e(f"v_bfe_u32 v{t1}, v0, 2, 1")
        p.e(f"v_lshrrev_b32 v{t2}, 5, v0")
        p.e(f"v_cmp_eq_u32 vcc, v{t1}, v{t2}")
        p.e(f"v_cndmask_b32 v{t0}, 0, v{t0}, vcc")
        p.e(f"v_bfe_u32 v{t1}, v0, 3, 2")
        p.e(f"v_bfe_u32 v{t2}, v0, 1, 1")
        p.e(f"v_lshl_or_b32 v{t1}, v{t1}, 1, v{t2}")
        for q in range(8):
            p.e(f"v_cmp_eq_u32 vcc, {q}, v{t1}")
            p.e(f"v_cndmask_b32 v{vsel+q}, 0, v{t0}, vcc")

    def nonce_issue(self, p, vn, vzero):
        p.e(f"global_load_dword v{vn}, v{vzero}, {sr(P_DBG,2)} sc1", tag="nonce")

    def nonce_get(self, p, vn, vzero):
        p.wait_vm("nonce")
        p.e(f"v_readfirstlane_b32 s{S_NONCE}, v{vn}")
        ok, lp = self.lab("nok"), self.lab("nlp")
        p.e(f"s_cmp_lg_u32 s{S_NONCE}, 0")
        p.fence()
        p.e(f"s_cbranch_scc1 {ok}")
        p.e(f"s_mov_b32 s{S_CNT}, 0")
        p.label(lp)
        p.e("s_sleep 4")
        p.raw(f"    global_load_dword v{vn}, v{vzero}, {sr(P_DBG,2)} sc1")
        p.raw("    s_waitcnt vmcnt(0)")
        p.e(f"v_readfirstlane_b32 s{S_NONCE}, v{vn}")
        p.e(f"s_add_u32 s{S_CNT}, s{S_CNT}, 1")
        p.e(f"s_cmp_ge_u32 s{S_CNT}, 20000")
        p.e(f"s_cbranch_scc1 {ok}")
        p.e(f"s_cmp_eq_u32 s{S_NONCE}, 0")
        p.e(f"s_cbranch_scc1 {lp}")
        p.label(ok)

    def poll_issue(self, p, vf, voff, soff, tag):
        p.e(f"buffer_load_dword v{vf}, v{voff}, {sr(SWS,4)}, s{soff} offen sc1", tag=tag)

    def poll_check(self, p, vf, voff, soff, tag):
        p.wait_vm(tag)
        ok, lp = self.lab("pok"), self.lab("plp")
        p.e(f"v_cmp_ne_u32 vcc, s{S_NONCE}, v{vf}")
        p.e("s_cmp_eq_u64 vcc, 0")
        p.fence()
        p.e(f"s_cbranch_scc1 {ok}")
        p.e(f"s_mov_b32 s{S_CNT}, 0")
        p.label(lp)
        p.e("s_sleep 2")
        p.raw(f"    buffer_load_dword v{vf}, v{voff}, {sr(SWS,4)}, s{soff} offen sc1")
        p.raw("    s_waitcnt vmcnt(0)")
        p.e(f"s_add_u32 s{S_CNT}, s{S_CNT}, 1")
        p.e(f"s_cmp_ge_u32 s{S_CNT}, 20000")
        p.e(f"s_cbranch_scc1 {ok}")
        p.e(f"v_cmp_ne_u32 vcc, s{S_NONCE}, v{vf}")
        p.e("s_cmp_lg_u64 vcc, 0")
        p.e(f"s_cbranch_scc1 {lp}")
        p.label(ok)

    def flag_store(self, p, vtmp, soff):
        p.wait_vm0()
        p.e(f"v_mov_b32 v{vtmp}, s{S_NONCE}")
        p.e("s_mov_b64 exec, 1")
        p.e(f"buffer_store_dword v{vtmp}, off, {sr(SWS,4)}, s{soff} sc1", tag="flag")
        p.e("s_mov_b64 exec, -1")

    def softmax(self, P, out, t):
        a = []
        a.append(f"v_max3_f32 v{t}, v{P}, v{P+1}, v{P+2}")
        a.append(f"v_max3_f32 v{t+1}, v{P+3}, v{P+4}, v{P+5}")
        a.append(f"v_max3_f32 v{t+2}, v{P+6}, v{P+7}, v{P+8}")
        a.append(f"v_max3_f32 v{t+3}, v{P+9}, v{P+10}, v{P+11}")
        a.append(f"v_max3_f32 v{t}, v{t}, v{P+12}, v{P+13}")
        a.append(f"v_max3_f32 v{t+1}, v{t+1}, v{P+14}, v{P+15}")
        a.append(f"v_max3_f32 v{t}, v{t}, v{t+2}, v{t+3}")
        a.append(f"v_max_f32 v{t}, v{t}, v{t+1}")
        a.append(f"v_mul_f32 v{t}, 0xbfb8aa3b, v{t}")
        if self.c.pk:
            for i in range(0, 16, 2):
                a.append(f"v_pk_fma_f32 {vr(P+i,2)}, {vr(P+i,2)}, {sr(S_L2E,2)}, {vr(t,2)} op_sel_hi:[1,1,0]")
        else:
            for i in range(16):
                a.append(f"v_fma_f32 v{P+i}, v{P+i}, s{S_L2E}, v{t}")
        b = []
        for i in range(16):
            b.append(f"v_exp_f32 v{P+i}, v{P+i}")
        if self.c.pk:
            b.append(f"v_pk_add_f32 {vr(t,2)}, {vr(P,2)}, {vr(P+2,2)}")
            b.append(f"v_pk_add_f32 {vr(t+2,2)}, {vr(P+4,2)}, {vr(P+6,2)}")
            b.append(f"v_pk_add_f32 {vr(t,2)}, {vr(t,2)}, {vr(P+8,2)}")
            b.append(f"v_pk_add_f32 {vr(t+2,2)}, {vr(t+2,2)}, {vr(P+10,2)}")
            b.append(f"v_pk_add_f32 {vr(t,2)}, {vr(t,2)}, {vr(P+12,2)}")
            b.append(f"v_pk_add_f32 {vr(t+2,2)}, {vr(t+2,2)}, {vr(P+14,2)}")
            b.append(f"v_pk_add_f32 {vr(t,2)}, {vr(t,2)}, {vr(t+2,2)}")
            b.append(f"v_add_f32 v{t}, v{t}, v{t+1}")
            b.append(f"v_rcp_f32 v{t}, v{t}")
            for i in range(0, 16, 2):
                b.append(f"v_pk_mul_f32 {vr(P+i,2)}, {vr(P+i,2)}, {vr(t,2)} op_sel_hi:[1,0]")
        else:
            for k in range(4):
                b.append(f"v_add_f32 v{t+k}, v{P+k}, v{P+4+k}")
            for k in range(4):
                b.append(f"v_add_f32 v{t+k}, v{t+k}, v{P+8+k}")
            for k in range(4):
                b.append(f"v_add_f32 v{t+k}, v{t+k}, v{P+12+k}")
            b.append(f"v_add_f32 v{t}, v{t}, v{t+1}")
            b.append(f"v_add_f32 v{t+2}, v{t+2}, v{t+3}")
            b.append(f"v_add_f32 v{t}, v{t}, v{t+2}")
            b.append(f"v_rcp_f32 v{t}, v{t}")
            for i in range(16):
                b.append(f"v_mul_f32 v{P+i}, v{P+i}, v{t}")
        for i in range(8):
            b.append(f"v_cvt_pk_bf16_f32 v{out+i}, v{P+2*i}, v{P+2*i+1}")
        return a, b

    @staticmethod
    def cvt(dst, src, n):
        return [f"v_cvt_pk_bf16_f32 v{dst+i}, v{src+2*i}, v{src+2*i+1}" for i in range(n)]

    def compute(self, attn):
        c = self.c
        p = Prog("comp_attn" if attn else "comp_ffn")
        p.raw("L_comp_attn:" if attn else "L_comp_ffn:")
        VXA = 2
        VWA = 6
        VWB0, VWB1, VWH = 7, 8, 9
        VAA, VAA2, VBA, VBA2 = 10, 11, 12, 13
        VL16 = 14
        VT0, VT1, VT2, VT3 = 16, 17, 18, 19
        VZ, VN = 20, 21
        VPH, VSG = 22, 23
        VT4, VT5, VT6, VT7 = 24, 25, 26, 27
        VOUT = 28
        VG = 29
        ACC = 32
        FS = (96, 136)
        WPHI, SEL, CONES, GW = 176, 192, 200, 216
        NC = 2 if attn else 3
        SC1, SC2, SC3, SF_A, SF_B, SST1, SST2, SST3, SGP = S_C, S_C + 1, S_C + 2, S_C + 3, S_C + 4, S_C + 5, S_C + 6, S_C + 7, S_C + 8

        p.e(f"v_mov_b32 v{VZ}, 0")
        skip = self.lab("nw")
        p.e(f"s_lshl_b32 s{S_T0}, s2, 3")
        p.e(f"s_add_u32 s{S_T0}, s{S_T0}, s{S_WAVE}")
        p.e(f"s_cmp_lg_u32 s{S_T0}, 8")
        p.e(f"s_cbranch_scc1 {skip}")
        p.e(f"s_memrealtime {sr(S_T2-1,2)}")
        p.e("s_waitcnt lgkmcnt(0)")
        p.e(f"s_or_b32 s{S_T0}, s{S_T2-1}, 1")
        p.e(f"v_mov_b32 v{VN}, s{S_T0}")
        p.e("s_mov_b64 exec, 1")
        p.raw(f"    global_store_dword v{VZ}, v{VN}, {sr(P_DBG,2)} sc1")
        p.e("s_mov_b64 exec, -1")
        p.label(skip)
        p.e(f"v_lshlrev_b32 v{VL16}, 4, v0")
        if c.code_prefetch:
            p.e(f"s_getpc_b64 {sr(S_T2-1,2)}")
            p.raw(f"L_pc_{p.name}:")
            p.e(f"s_sub_u32 s{S_T2-1}, s{S_T2-1}, L_pc_{p.name}-{KNAME}")
            p.e(f"s_subb_u32 s{S_T2}, s{S_T2}, 0")
            p.e(f"s_lshr_b32 s{S_T0}, s2, 3")
            p.e(f"s_lshl_b32 s{S_T0}, s{S_T0}, 2")
            p.e(f"s_add_u32 s{S_T0}, s{S_T0}, s{S_WAVE}")
            p.e(f"s_lshl_b32 s{S_T0}, s{S_T0}, 10")
            p.e(f"s_min_u32 s{S_T0}, s{S_T0}, L_code_end-{KNAME}-1024")
            p.e(f"v_add_u32 v{VT0}, s{S_T0}, v{VL16}")
            p.e(f"global_load_dwordx4 v[{FS[0]}:{FS[0]+3}], v{VT0}, {sr(S_T2-1,2)}", tag="cpf")
        if attn:
            p.e(f"v_lshrrev_b32 v{VT0}, 5, v0")
            p.e(f"v_lshlrev_b32 v{VT0}, 4, v{VT0}")
            p.e(f"s_lshl_b32 s{S_T0}, s{S_UNIT}, 7")
            p.e(f"v_add_u32 v{VT0}, s{S_T0}, v{VT0}")
            for kk in range(4):
                p.e(f"global_load_dwordx4 {vr(GW+4*kk,4)}, v{VT0}, {sr(P_GATE,2)} offset:{32*kk}", tag="gw")
        p.e(f"v_and_b32 v{VT0}, 31, v0")
        p.e(f"v_lshrrev_b32 v{VT1}, 5, v0")
        p.e(f"v_bfe_u32 v{VT2}, v0, 1, 3")
        p.e(f"v_xor_b32 v{VT2}, v{VT2}, v{VT1}")
        p.e(f"v_lshlrev_b32 v{VT2}, 4, v{VT2}")
        p.e(f"v_lshl_or_b32 v{VXA}, v{VT0}, 7, v{VT2}")
        for kk in range(1, 4):
            p.e(f"v_xor_b32 v{VXA+kk}, {32*kk}, v{VXA}")
        p.e(f"v_bfe_u32 v{VT0}, v0, 2, 2")
        p.e(f"v_lshl_or_b32 v{VT0}, v{VT1}, 3, v{VT0}")
        p.e(f"v_and_b32 v{VT4}, 1, v0")
        p.e(f"v_bfe_u32 v{VT5}, v0, 1, 1")
        p.e(f"v_lshlrev_b32 v{VT1}, 4, v{VT4}")
        p.e(f"v_lshl_or_b32 v{VT1}, v{VT5}, 3, v{VT1}")
        p.e(f"v_bfe_u32 v{VT2}, v0, 4, 1")
        p.e(f"v_bfe_u32 v{VT3}, v0, 3, 1")
        p.e(f"v_lshlrev_b32 v{VT3}, 6, v{VT3}")
        if attn:
            p.e(f"s_lshl_b32 s{S_T0}, s{S_LW}, 5")
            p.e(f"v_add_u32 v{VT6}, s{S_T0}, v{VT1}")
            p.e(f"v_lshl_or_b32 v{VT7}, v{VT2}, 5, v{VT3}")
            p.e(f"v_xor_b32 v{VT6}, v{VT6}, v{VT7}")
            p.e(f"v_lshl_or_b32 v{VT6}, v{VT2}, 12, v{VT6}")
            p.e(f"v_lshl_add_u32 v{VT6}, v{VT0}, 7, v{VT6}")
            p.e(f"v_add_u32 v{VWA}, {RING}, v{VT6}")
        else:
            p.e(f"s_and_b32 s{S_T0}, s{S_LW}, 1")
            p.e(f"s_lshl_b32 s{S_T0}, s{S_T0}, 6")
            p.e(f"s_lshr_b32 s{S_T1}, s{S_LW}, 1")
            p.e(f"s_lshl_b32 s{S_T2}, s{S_T1}, 5")
            p.e(f"s_xor_b32 s{S_T0}, s{S_T0}, s{S_T2}")
            p.e(f"s_lshl_b32 s{S_T1}, s{S_T1}, 12")
            p.e(f"s_add_u32 s{S_T1}, s{S_T1}, {RING}")
            p.e(f"v_lshl_or_b32 v{VT6}, v{VT2}, 5, v{VT1}")
            p.e(f"v_xor_b32 v{VT6}, v{VT6}, v{VT3}")
            p.e(f"v_xor_b32 v{VT6}, s{S_T0}, v{VT6}")
            p.e(f"v_lshl_add_u32 v{VT6}, v{VT0}, 7, v{VT6}")
            p.e(f"v_add_u32 v{VWA}, s{S_T1}, v{VT6}")
        p.e(f"v_lshl_or_b32 v{VT6}, v{VT2}, 5, v{VT1}")
        p.e(f"v_xor_b32 v{VT7}, v{VT6}, v{VT3}")
        p.e(f"v_lshl_add_u32 v{VT7}, v{VT0}, 7, v{VT7}")
        p.e(f"v_add_u32 v{VWB0}, {RING}, v{VT7}")
        p.e(f"v_xor_b32 v{VWB1}, 64, v{VWB0}")
        p.e(f"v_lshl_add_u32 v{VT7}, v{VT0}, 6, v{VT6}")
        p.e(f"v_add_u32 v{VWH}, {RING+4096}, v{VT7}")
        p.e(f"s_lshr_b32 s{S_T0}, s{S_LW}, 1")
        p.e(f"s_lshl_b32 s{S_T0}, s{S_T0}, 12")
        p.e(f"v_add_u32 v{VAA}, s{S_T0}, v{VL16}")
        p.e(f"v_add_u32 v{VAA2}, 0x10000, v{VAA}")
        p.e(f"v_lshlrev_b32 v{VT6}, 5, v{VT4}")
        p.e(f"v_lshl_or_b32 v{VT6}, v{VT2}, 4, v{VT6}")
        p.e(f"v_lshl_or_b32 v{VT6}, v{VT5}, 3, v{VT6}")
        p.e(f"v_xor_b32 v{VT6}, v{VT6}, v{VT3}")
        p.e(f"s_and_b32 s{S_T0}, s{S_LW}, 1")
        p.e(f"s_lshl_b32 s{S_T0}, s{S_T0}, 6")
        p.e(f"v_xor_b32 v{VT6}, s{S_T0}, v{VT6}")
        p.e(f"v_lshl_add_u32 v{VT6}, v{VT0}, 7, v{VT6}")
        p.e(f"v_add_u32 v{VBA}, 8192, v{VT6}")
        p.e(f"v_add_u32 v{VBA2}, 0x10000, v{VBA}")
        p.e(f"v_and_b32 v{VT6}, 31, v0")
        p.e(f"v_lshrrev_b32 v{VT7}, 5, v0")
        p.e(f"v_lshlrev_b32 v{VT7}, 5, v{VT7}")
        p.e(f"v_lshl_or_b32 v{VOUT}, v{VT6}, 10, v{VT7}")
        p.e(f"s_lshl_b32 s{S_T1}, s{S_MM}, 1")
        p.e(f"s_lshr_b32 s{S_T2}, s{S_LW}, 1")
        p.e(f"s_add_u32 s{S_T1}, s{S_T1}, s{S_T2}")
        p.e(f"s_lshl_b32 s{S_T2}, s{S_T1}, 15")
        p.e(f"s_lshl_b32 s{S_T3}, s{S_NN}, 7")
        p.e(f"s_add_u32 s{S_T2}, s{S_T2}, s{S_T3}")
        p.e(f"s_add_u32 s{S_T2}, s{S_T2}, s{S_T0}")
        p.e(f"v_add_u32 v{VOUT}, s{S_T2}, v{VOUT}")
        p.e(f"s_lshr_b32 s{S_T2}, s{S_T1}, 2")
        p.e(f"s_lshl_b32 s{S_T2}, s{S_T2}, 12")
        p.e(f"s_and_b32 s{S_T3}, s{S_T1}, 3")
        p.e(f"s_lshl_b32 s{S_T3}, s{S_T3}, 7")
        p.e(f"s_add_u32 s{S_T2}, s{S_T2}, s{S_T3}")
        p.e(f"s_add_u32 s{S_T2}, s{S_T2}, {GP}")
        p.e(f"v_lshl_add_u32 v{VG}, v{VT6}, 2, s{S_T2}")
        p.e(f"s_lshl_b32 s{S_T1}, s{S_M}, 1")
        p.e(f"s_lshr_b32 s{S_T2}, s{S_LW}, 1")
        p.e(f"s_add_u32 s{S_T1}, s{S_T1}, s{S_T2}")
        p.e(f"s_lshl_b32 s{S_T1}, s{S_T1}, 7")
        p.e(f"s_lshl_b32 s{S_T2}, s{S_UNIT}, 3")
        p.e(f"s_and_b32 s{S_T3}, s{S_LW}, 1")
        p.e(f"s_lshl_b32 s{S_T3}, s{S_T3}, 2")
        p.e(f"s_add_u32 s{S_T1}, s{S_T1}, s{S_T2}")
        p.e(f"s_add_u32 s{S_T1}, s{S_T1}, s{S_T3}")
        p.e(f"s_add_u32 s{SF_B}, s{S_T1}, {F3 if attn else F2}")
        p.e(f"s_mul_i32 s{S_T4}, s{S_M}, {4*144*1024}")
        if attn:
            p.e(f"s_lshl_b32 s{S_T1}, s{S_UNIT}, 2")
            p.e(f"s_add_u32 s{S_T1}, s{S_T1}, s{S_LW}")
            p.e(f"s_lshl_b32 s{S_T2}, s{S_T1}, 7")
            p.e(f"s_lshl_b32 s{S_T3}, s{S_M}, 2")
            p.e(f"s_add_u32 s{S_T2}, s{S_T2}, s{S_T3}")
            p.e(f"s_add_u32 s{SF_A}, s{S_T2}, {FK}")
            p.e(f"s_lshl_b32 s{S_T1}, s{S_T1}, 4")
            p.e(f"s_add_u32 s{S_T1}, s{S_T1}, s{S_M}")
            p.e(f"s_mul_i32 s{S_T1}, s{S_T1}, 1152")
            p.e(f"s_add_u32 s{SST1}, s{S_T1}, {KVP}")
            p.e(f"s_mul_i32 s{S_T1}, s{S_LW}, {144*1024}")
            p.e(f"s_lshl_b32 s{S_T2}, s{S_UNIT}, 12")
            p.e(f"s_add_u32 s{S_T1}, s{S_T1}, s{S_T2}")
            p.e(f"s_add_u32 s{S_T1}, s{S_T1}, s{S_T4}")
            p.e(f"s_add_u32 s{SST2}, s{S_T1}, {112*1024}")
            p.e(f"s_lshl_b32 s{S_T1}, s{S_M}, 3")
            p.e(f"s_add_u32 s{S_T1}, s{S_T1}, s{S_UNIT}")
            p.e(f"s_lshl_b32 s{S_T1}, s{S_T1}, 9")
            p.e(f"s_lshl_b32 s{S_T2}, s{S_LW}, 7")
            p.e(f"s_add_u32 s{S_T1}, s{S_T1}, s{S_T2}")
            p.e(f"s_add_u32 s{SGP}, s{S_T1}, {GP}")
            p.e(f"s_sub_u32 s{S_T1}, s{S_UNIT}, s{S_ROT}")
            p.e(f"s_and_b32 s{S_T1}, s{S_T1}, 7")
            p.e(f"s_lshl_b32 s{S_T1}, s{S_T1}, 14")
            p.e(f"s_lshl_b32 s{S_T2}, s{S_LW}, 12")
            p.e(f"s_add_u32 s{SST3}, s{S_T1}, s{S_T2}")
            p.e(f"v_lshlrev_b32 v{VT6}, 4, v{VT2}")
            p.e(f"v_lshl_or_b32 v{VT6}, v{VT5}, 3, v{VT6}")
            p.e(f"v_lshl_add_u32 v{VT6}, v{VT0}, 5, v{VT6}")
            p.e(f"v_add_u32 v{VPH}, {7*16384}, v{VT6}")
            p.e(f"v_bfe_u32 v{VT6}, v0, 2, 1")
            p.e(f"v_cmp_eq_u32 vcc, 1, v{VT6}")
            p.e(f"v_mov_b32 v{VT7}, 0x80008000")
            p.e(f"v_cndmask_b32 v{VSG}, 0, v{VT7}, vcc")
            self.build_sel(p, SEL, VT4, VT5, VT6)
            p.e(f"v_bfe_u32 v{VT6}, v0, 4, 1")
            p.e(f"v_cvt_f32_u32 v{CONES}, v{VT6}")
            for i in range(1, 16):
                p.e(f"v_mov_b32 v{CONES+i}, v{CONES}")
        else:
            self.ffn_cols(p, SC1, SC2, SC3)
            p.e(f"s_lshl_b32 s{S_T1}, s{S_M}, 7")
            p.e(f"s_lshl_b32 s{S_T2}, s{S_UNIT}, 4")
            p.e(f"s_lshl_b32 s{S_T3}, s{S_LW}, 2")
            p.e(f"s_add_u32 s{S_T1}, s{S_T1}, s{S_T2}")
            p.e(f"s_add_u32 s{S_T1}, s{S_T1}, s{S_T3}")
            p.e(f"s_add_u32 s{SF_A}, s{S_T1}, {F1}")
            p.e(f"s_lshl_b32 s{S_T1}, s{S_LW}, 5")
            p.e(f"s_add_u32 s{S_T1}, s{S_T1}, s{SC1}")
            p.e(f"s_lshl_b32 s{S_T1}, s{S_T1}, 6")
            p.e(f"s_add_u32 s{SST1}, s{S_T1}, s{S_T4}")
            p.e(f"s_mul_i32 s{S_T1}, s{S_LW}, {144*1024}")
            p.e(f"s_add_u32 s{S_T1}, s{S_T1}, s{S_T4}")
            p.e(f"s_lshl_b32 s{S_T2}, s{SC2}, 6")
            p.e(f"s_add_u32 s{SST2}, s{S_T1}, s{S_T2}")
            p.e(f"s_lshl_b32 s{S_T2}, s{SC3}, 6")
            p.e(f"s_add_u32 s{SST3}, s{S_T1}, s{S_T2}")
        if c.code_prefetch:
            p.wait_vm("cpf")

        def p1_reads(g):
            f = FS[g & 1]
            ch = g >> 1
            xs, ws = [], []
            for k2 in range(2):
                kk = 2 * (g & 1) + k2
                for rb in range(4):
                    xs.append(f"ds_read_b128 {vr(f+20*k2+4*rb,4)}, v{VXA+kk} offset:{(ch&3)*16384 + rb*4096}")
                for rd in range(2):
                    ws.append(f"ds_read_b64_tr_b16 {vr(f+20*k2+16+2*rd,2)}, v{VWA} offset:{(g&3)*8192 + (16*k2+4*rd)*128}")
            out = []
            for i in range(4):
                out += [xs[2 * i], xs[2 * i + 1], ws[i]]
            return out

        def p1_mfma(g):
            f = FS[g & 1]
            out = []
            for k2 in range(2):
                for rb in range(4):
                    out.append(mfma(ACC + 16 * rb, f + 20 * k2 + 16, f + 20 * k2 + 4 * rb, None if (g == 0 and k2 == 0) else ACC + 16 * rb))
            return out

        def p2_reads(i):
            g = 16 + i
            f = FS[g & 1]
            ch = i >> 1
            out = []
            st = 4 + 4 * NC
            for k2 in range(2):
                kk = 2 * (i & 1) + k2
                out.append(f"ds_read_b128 {vr(f+st*k2,4)}, v{VXA+kk} offset:{(ch&3)*16384}")
                for cb in range(NC):
                    for rd in range(2):
                        if cb < 2:
                            out.append(f"ds_read_b64_tr_b16 {vr(f+st*k2+4+4*cb+2*rd,2)}, v{VWB0+cb} offset:{(g&3)*8192 + (16*k2+4*rd)*128}")
                        else:
                            out.append(f"ds_read_b64_tr_b16 {vr(f+st*k2+4+4*cb+2*rd,2)}, v{VWH} offset:{(g&3)*8192 + (16*k2+4*rd)*64}")
            return out

        def p2_mfma(i):
            g = 16 + i
            f = FS[g & 1]
            st = 4 + 4 * NC
            out = []
            for k2 in range(2):
                for cb in range(NC):
                    out.append(mfma(ACC + 16 * cb, f + st * k2 + 4 + 4 * cb, f + st * k2, None if (i == 0 and k2 == 0) else ACC + 16 * cb))
            return out

        def ph2_reads(t):
            f = FS[t & 1]
            sl = t & 7
            va, vb = (VAA, VBA) if sl < 4 else (VAA2, VBA2)
            out = []
            for kb in range(4):
                out.append(f"ds_read_b128 {vr(f+8*kb,4)}, v{va} offset:{(sl&3)*16384 + kb*1024}")
                for rd in range(2):
                    out.append(f"ds_read_b64_tr_b16 {vr(f+8*kb+4+2*rd,2)}, v{vb} offset:{(sl&3)*16384 + (16*kb+4*rd)*128}")
            return out

        def ph2_mfma(t):
            f = FS[t & 1]
            acc = ACC if t < 28 else ACC + 16
            out = []
            for kb in range(4):
                first = (t in (0, 28)) and kb == 0
                out.append(mfma(acc, f + 8 * kb + 4, f + 8 * kb, None if first else acc))
            return out

        def bar(first=False):
            if not first:
                p.e("s_waitcnt lgkmcnt(0)")
            p.e("s_barrier")

        def emit(lst):
            for x in lst:
                p.e(x)

        for g in range(16):
            bar(g == 0)
            if g == 0:
                self.stamp(p, 1)
            if g == 8:
                for kk in range(4):
                    p.e(f"v_add_u32 v{VXA+kk}, 0x10000, v{VXA+kk}")
            if g == 10:
                self.nonce_issue(p, VN, VZ)
            rd = p1_reads(g)
            if g == 0:
                emit(rd)
                if attn:
                    for h in range(4):
                        for r2 in range(2):
                            p.e(f"ds_read_b64_tr_b16 {vr(WPHI+4*h+2*r2,2)}, v{VPH} offset:{h*512 + r2*128}")
            else:
                emit(interleave(p1_mfma(g - 1), rd, 3))
            if g == 1 and attn:
                for i in range(16):
                    p.e(f"v_xor_b32 v{WPHI+i}, v{WPHI+i}, v{VSG}")
        bar()
        self.stamp(p, 2)
        p.e(f"s_lshl_b32 s{S_T0}, s{S_LW}, 12")
        p.e(f"s_sub_u32 s{S_T0}, s{S_T0}, 0x10000")
        for kk in range(4):
            p.e(f"v_add_u32 v{VXA+kk}, s{S_T0}, v{VXA+kk}")
        emit(interleave(p1_mfma(15), p2_reads(0), 2))
        self.nonce_get(p, VN, VZ)
        if attn:
            self.epi1_attn(p, ACC, WPHI, SEL, CONES, GW, VXA, VL16, SST1, SGP, SST3, (VT0, VT1, VT2, VT3, VT4, VT5, VT6, VT7))
        else:
            T = FS[1]
            for rb in range(4):
                t = T + 8 * rb
                emit(self.cvt(t, ACC + 16 * rb, 8))
                for i in range(8):
                    p.e(f"v_pk_max_i16 v{t+i}, v{t+i}, 0")
                if rb:
                    p.e(f"s_add_u32 s{SST1}, s{SST1}, {144*1024}")
                p.e(f"buffer_store_dwordx4 {vr(t,4)}, v{VL16}, {sr(SWS,4)}, s{SST1} offen sc1", tag="h1")
                p.e(f"buffer_store_dwordx4 {vr(t+4,4)}, v{VL16}, {sr(SWS,4)}, s{SST1} offen offset:1024 sc1", tag="h1")
        self.stamp(p, 3)
        for i in range(1, 16):
            bar()
            if i == 8:
                for kk in range(4):
                    p.e(f"v_add_u32 v{VXA+kk}, 0x10000, v{VXA+kk}")
            emit(interleave(p2_mfma(i - 1), p2_reads(i), 3))
            if i == c.Y1:
                self.flag_store(p, VT0, SF_A)
        bar()
        self.stamp(p, 4)
        emit(p2_mfma(15))
        PHIQ = 200
        if attn:
            QB = FS[0]
            for cb in range(2):
                emit(self.cvt(QB + 8 * cb, ACC + 16 * cb, 8))
            PB = (64, 80)
            p.e(mfma(PB[0], WPHI, QB, None))
            p.e(mfma(PB[1], WPHI + 4, QB + 4, None))
            for h in range(4):
                a, b = self.softmax(PB[h & 1], PHIQ + 8 * h, VT0)
                emit(a + b)
                if h + 2 < 4:
                    p.e(mfma(PB[h & 1], WPHI + 4 * (h + 2), QB + 4 * (h + 2), None))
        else:
            T = FS[0]
            for cb in range(3):
                t = T + 8 * cb
                emit(self.cvt(t, ACC + 16 * cb, 8))
                for i in range(8):
                    p.e(f"v_pk_max_i16 v{t+i}, v{t+i}, 0")
                so, off = (SST2, 2048 * cb) if cb < 2 else (SST3, 0)
                p.e(f"buffer_store_dwordx4 {vr(t,4)}, v{VL16}, {sr(SWS,4)}, s{so} offen offset:{off} sc1", tag="h2")
                p.e(f"buffer_store_dwordx4 {vr(t+4,4)}, v{VL16}, {sr(SWS,4)}, s{so} offen offset:{off+1024} sc1", tag="h2")
        self.stamp(p, 5)
        GPV = 64
        for t in range(36):
            bar()
            if t == 0:
                self.stamp(p, 6)
                emit(ph2_reads(0))
                if attn:
                    KZ = (176, 184, 192, 232)
                    p.e(f"v_add_u32 v{VT0}, {RING}, v{VL16}")
                    for h in range(4):
                        for u in range(2):
                            p.e(f"ds_read_b128 {vr(KZ[h]+4*u,4)}, v{VT0} offset:{h*2048+u*1024}")
                    p.e("s_waitcnt lgkmcnt(0)")
                    NB = (64, 80)
                    OP = 240

                    def nm(h):
                        p.e(mfma(NB[h & 1], KZ[h], PHIQ + 8 * h, None))
                        p.e(mfma(NB[h & 1], KZ[h] + 4, PHIQ + 8 * h + 4, NB[h & 1]))
                    nm(0)
                    nm(1)
                    for h in range(4):
                        N = NB[h & 1]
                        p.e(f"v_add_f32 v{VT2}, 0x358637bd, v{N+8}")
                        p.e(f"v_rcp_f32 v{VT2}, v{VT2}")
                        for i in range(0, 8, 2):
                            p.e(f"v_pk_mul_f32 {vr(N+i,2)}, {vr(N+i,2)}, {vr(VT2,2)} op_sel_hi:[1,0]")
                        emit(self.cvt(OP + 4 * h, N, 4))
                        p.e(f"buffer_store_dwordx4 {vr(OP+4*h,4)}, v{VL16}, {sr(SWS,4)}, s{SST2} offen offset:{h*1024} sc1", tag="o")
                        if h + 2 < 4:
                            nm(h + 2)
            else:
                emit(interleave(ph2_mfma(t - 1), ph2_reads(t), 3))
            if t == c.Y2:
                self.flag_store(p, VT0, SF_B)
            if t == 30:
                for hg in range(8):
                    p.e(f"buffer_load_dword v{GPV+hg}, v{VG}, {sr(SWS,4)}, 0 offen offset:{hg*512} sc1", tag="gp")
        p.e("s_waitcnt lgkmcnt(0)")
        emit(ph2_mfma(35))
        p.wait_vm("gp")
        for i in range(4):
            p.e(f"v_add_f32 v{GPV+i}, v{GPV+i}, v{GPV+4+i}")
        p.e(f"v_add_f32 v{GPV}, v{GPV}, v{GPV+1}")
        p.e(f"v_add_f32 v{GPV+2}, v{GPV+2}, v{GPV+3}")
        p.e(f"v_add_f32 v{GPV}, v{GPV}, v{GPV+2}")
        p.e(f"v_mul_f32 v{GPV}, 0xbfb8aa3b, v{GPV}")
        p.e(f"v_exp_f32 v{GPV}, v{GPV}")
        p.e(f"v_add_f32 v{GPV}, 1.0, v{GPV}")
        p.e(f"v_rcp_f32 v{GPV}, v{GPV}")
        p.e(f"v_sub_f32 v{GPV+2}, 1.0, v{GPV}")
        for i in range(0, 16, 2):
            p.e(f"v_pk_mul_f32 {vr(ACC+i,2)}, {vr(ACC+i,2)}, {vr(GPV+2,2)} op_sel_hi:[1,0]")
        for i in range(0, 16, 2):
            p.e(f"v_pk_fma_f32 {vr(ACC+i,2)}, {vr(ACC+16+i,2)}, {vr(GPV,2)}, {vr(ACC+i,2)} op_sel_hi:[1,0,1]")
        emit(self.cvt(80, ACC, 8))
        p.e(f"buffer_store_dwordx4 {vr(80,4)}, v{VOUT}, {sr(SOUT,4)}, 0 offen", tag="out")
        p.e(f"buffer_store_dwordx4 {vr(84,4)}, v{VOUT}, {sr(SOUT,4)}, 0 offen offset:16", tag="out")
        if c.stamps:
            p.wait_vm0()
            self.stamp(p, 7)
            self.stamps_out(p, 8, 96)
        p.e("s_endpgm")
        return p

    def epi1_attn(self, p, ACC, WPHI, SEL, CONES, GW, VXA, VL16, SKV, SGP, SGCH, T):
        def emit(lst):
            for x in lst:
                p.e(x)
        KVB = 136
        PHI = 168
        VNP = 248
        PTP = 128
        KV = 232
        PB = (32, 48)
        VN, PT = 64, 80
        XG = 120
        WH = T[4]
        for h in range(4):
            pass
        done = self.lab("wh")
        for h in range(4):
            nxt = self.lab("whn")
            if h < 3:
                p.e(f"s_cmp_lg_u32 s{S_LW}, {h}")
                p.fence()
                p.e(f"s_cbranch_scc1 {nxt}")
            for i in range(4):
                p.e(f"v_mov_b32 v{WH+i}, v{WPHI+4*h+i}")
            if h < 3:
                p.fence()
                p.e(f"s_branch {done}")
                p.label(nxt)
        p.label(done)
        for rb in range(4):
            emit(self.cvt(KVB + 8 * rb, ACC + 16 * rb, 8))
        p.e(f"s_lshl_b32 s{S_T0}, s{S_LW}, 12")
        p.e(f"s_sub_u32 s{S_T0}, s{SGCH}, s{S_T0}")
        GX = PT
        for kk in range(4):
            p.e(f"v_add_u32 v{T[kk]}, s{S_T0}, v{VXA+kk}")
            p.e(f"ds_read_b128 {vr(GX+4*kk,4)}, v{T[kk]}")
        p.e(mfma(PB[0], WH, KVB, None))
        p.e(mfma(PB[1], WH, KVB + 8, None))
        p.wait_vm("gw")
        p.e("s_waitcnt lgkmcnt(0)")
        for kk in range(4):
            p.e(mfma(VN, GW + 4 * kk, GX + 4 * kk, None if kk == 0 else VN))
        a, b = self.softmax(PB[0], PHI, T[0])
        emit(a)
        p.e(f"v_lshlrev_b32 v{XG}, 2, v0")
        p.e("s_mov_b32 exec_hi, 0")
        p.e(f"buffer_store_dword v{VN}, v{XG}, {sr(SWS,4)}, s{SGP} offen sc1", tag="gps")
        p.e("s_mov_b64 exec, -1")
        p.e(mfma(VN, KVB + 4, SEL, CONES))
        emit(b)
        for rb in range(4):
            p.e(mfma(PT, PHI, SEL, None))
            p.e(mfma(PT, PHI + 4, SEL + 4, PT))
            if rb + 2 < 4:
                p.e(mfma(PB[rb & 1], WH, KVB + 8 * (rb + 2), None))
            emit(self.cvt(VNP, VN, 8))
            if rb + 1 < 4:
                p.e(mfma(VN, KVB + 8 * (rb + 1) + 4, SEL, CONES))
                a, b = self.softmax(PB[(rb + 1) & 1], PHI, T[0])
                emit(a)
            emit(self.cvt(PTP, PT, 8))
            p.e(mfma(KV, PTP, VNP, None if rb == 0 else KV))
            p.e(mfma(KV, PTP + 4, VNP + 4, KV))
            if rb + 1 < 4:
                emit(b)
        p.e(f"v_lshrrev_b32 v{T[0]}, 5, v0")
        p.e(f"v_and_b32 v{T[1]}, 31, v0")
        p.e(f"v_mad_u32_u24 v{T[0]}, v{T[0]}, 17, v{T[1]}")
        p.e(f"v_lshlrev_b32 v{T[0]}, 4, v{T[0]}")
        emit(self.cvt(PTP, KV, 8))
        p.e("s_mov_b32 exec_lo, 0x1ffff")
        p.e("s_mov_b32 exec_hi, 0x1ffff")
        p.e(f"buffer_store_dwordx4 {vr(PTP,4)}, v{T[0]}, {sr(SWS,4)}, s{SKV} offen sc1", tag="kvs")
        p.e(f"buffer_store_dwordx4 {vr(PTP+4,4)}, v{T[0]}, {sr(SWS,4)}, s{SKV} offen offset:{34*16} sc1", tag="kvs")
        p.e("s_mov_b64 exec, -1")

    def loader(self, attn):
        c = self.c
        p = Prog("load_attn" if attn else "load_ffn")
        p.raw("L_load_attn:" if attn else "L_load_ffn:")
        RS = 3072 if attn else 3584
        VX, VW1, VW2, VW3, VA, VB = 2, 3, 4, 5, 6, 7
        VT0, VT1, VT2, VT3 = 8, 9, 10, 11
        VZ, VN, VF, VFO32, VFO16, VKV, VPF = 12, 13, 14, 15, 16, 17, 18
        SEL = 192
        S_WL1K = 24
        S_WL2K = 25
        S_AB = 18
        S_W1L = 19
        S_FO1, S_FO2, S_FO3, S_FOK, S_KVB = 20, 21, 22, 23, 26
        S_C1, S_C2, S_C3 = 27, 28, 29
        S_WL512 = 16

        p.e(f"s_lshl_b32 s{S_WL1K}, s{S_LW}, 10")
        p.e(f"v_lshrrev_b32 v{VT0}, 3, v0")
        p.e(f"v_and_b32 v{VT1}, 7, v0")
        p.e(f"v_lshrrev_b32 v{VT2}, 4, v0")
        p.e(f"s_and_b32 s{S_T0}, s{S_LW}, 1")
        p.e(f"s_lshl_b32 s{S_T1}, s{S_T0}, 2")
        p.e(f"v_or_b32 v{VT2}, s{S_T1}, v{VT2}")
        p.e(f"v_xor_b32 v{VT2}, v{VT2}, v{VT1}")
        p.e(f"v_lshlrev_b32 v{VT2}, 4, v{VT2}")
        p.e(f"v_lshl_or_b32 v{VX}, v{VT0}, 10, v{VT2}")
        p.e(f"s_lshl_b32 s{S_T1}, s{S_M}, 17")
        p.e(f"s_lshl_b32 s{S_T2}, s{S_LW}, 13")
        p.e(f"s_add_u32 s{S_T1}, s{S_T1}, s{S_T2}")
        p.e(f"v_add_u32 v{VX}, s{S_T1}, v{VX}")
        for q in range(8):
            p.e(f"s_add_u32 s{S_T1}, s{S_ROT}, {q}")
            p.e(f"s_and_b32 s{S_T1}, s{S_T1}, 7")
            p.e(f"s_lshl_b32 s{S_KX+q}, s{S_T1}, 7")
            p.e(f"s_mul_i32 s{S_KW+q}, s{S_T1}, {64*RS}")

        def dma(v, srd, soff, m0s, m0c, tag, extra="", pre=None):
            p.e(f"s_add_u32 m0, s{m0s}, {m0c}")
            if pre:
                p.e(pre)
            p.e(f"buffer_load_dwordx4 v{v}, {sr(srd,4)}, {soff} offen {extra} lds".replace("  ", " "), tag=tag)

        def xhalf(hf):
            q = hf >> 1
            for i in range(2):
                ro = 64 * (hf & 1) + 32 * i
                dma(VX, SX, f"s{S_T0}", S_WL1K, q * 16384 + ro * 128, ("x", hf), pre=f"s_add_u32 s{S_T0}, s{S_KX+q}, {ro*1024}")

        xhalf(0)
        p.e(f"v_bfe_u32 v{VT2}, v0, 4, 1")
        p.e(f"v_lshlrev_b32 v{VT2}, 2, v{VT2}")
        p.e(f"v_xor_b32 v{VT2}, v{VT2}, v{VT1}")
        p.e(f"v_lshlrev_b32 v{VT2}, 4, v{VT2}")
        p.e(f"v_mul_u32_u24 v{VT3}, {RS}, v{VT0}")
        p.e(f"s_and_b32 s{S_T0}, s{S_LW}, 1")
        p.e(f"s_lshr_b32 s{S_T1}, s{S_LW}, 1")
        p.e(f"s_lshl_b32 s{S_W1L}, s{S_T0}, 12")
        p.e(f"s_lshl_b32 s{S_T2}, s{S_T1}, 10")
        p.e(f"s_add_u32 s{S_W1L}, s{S_W1L}, s{S_T2}")
        p.e(f"s_lshl_b32 s{S_T2}, s{S_T0}, 5")
        p.e(f"v_xor_b32 v{VW1}, s{S_T2}, v{VT2}")
        p.e(f"v_add_u32 v{VW1}, v{VW1}, v{VT3}")
        p.e(f"s_mul_i32 s{S_T1}, s{S_T1}, {8*RS}")
        if attn:
            p.e(f"s_lshl_b32 s{S_T2}, s{S_T0}, 10")
            p.e(f"s_add_u32 s{S_T1}, s{S_T1}, s{S_T2}")
            p.e(f"s_lshl_b32 s{S_T2}, s{S_UNIT}, 7")
            p.e(f"s_add_u32 s{S_T1}, s{S_T1}, s{S_T2}")
            p.e(f"s_add_u32 s{S_T1}, s{S_T1}, 1024")
        else:
            p.e(f"s_mov_b32 s{S_T3}, s{S_T0}")
            self.ffn_cols(p, S_C1, S_C2, S_C3)
            p.e(f"s_lshl_b32 s{S_T2}, s{S_T3}, 7")
            p.e(f"s_add_u32 s{S_T1}, s{S_T1}, s{S_T2}")
            p.e(f"s_lshl_b32 s{S_T2}, s{S_C1}, 1")
            p.e(f"s_add_u32 s{S_T1}, s{S_T1}, s{S_T2}")
        p.e(f"v_add_u32 v{VW1}, s{S_T1}, v{VW1}")

        def wstage(g):
            q = (g & 15) >> 1
            slot = RING + (g & 3) * 8192
            if g < 16:
                for i in range(2):
                    ro = 32 * (g & 1) + 16 * i
                    dma(VW1, SW1, f"s{S_T0}", S_W1L, slot + i * 2048, ("w", g), pre=f"s_add_u32 s{S_T0}, s{S_KW+q}, {ro*RS}")
            else:
                ro = 32 * (g & 1)
                dma(VW2, SW1, f"s{S_T0}", S_WL1K, slot, ("w", g), pre=f"s_add_u32 s{S_T0}, s{S_KW+q}, {ro*RS}")
                if not attn:
                    dma(VW3, SW1, f"s{S_T0}", S_WL512, slot + 4096, ("w", g), pre="s_mov_b32 exec_hi, 0")
                    p.e("s_mov_b64 exec, -1")

        xhalf(1)
        wstage(0)
        p.e(f"s_lshl_b32 s{S_WL512}, s{S_LW}, 9")
        p.e(f"v_lshlrev_b32 v{VA}, 4, v0")
        if attn:
            p.e(f"s_lshl_b32 s{S_T0}, s{S_UNIT}, 11")
            p.e(f"s_add_u32 s{S_T0}, s{S_T0}, s{S_WL512}")
            p.e("s_mov_b32 exec_hi, 0")
            dma(VA, SPHI, f"s{S_T0}", S_WL512, 7 * 16384, ("w", 0))
            p.e("s_mov_b64 exec, -1")
        for g in range(1, 4):
            xhalf(g + 1)
            wstage(g)
        p.e(f"v_mov_b32 v{VZ}, 0")
        p.e(f"s_lshl_b32 s{S_WL2K}, s{S_LW}, 11")
        p.e(f"v_add_u32 v{VW2}, v{VT2}, v{VT3}")
        p.e(f"s_mul_i32 s{S_T1}, s{S_LW}, {8*RS}")
        if attn:
            p.e(f"s_lshl_b32 s{S_T2}, s{S_UNIT}, 7")
        else:
            p.e(f"s_lshl_b32 s{S_T2}, s{S_C2}, 1")
        p.e(f"s_add_u32 s{S_T2}, s{S_T2}, s{S_T1}")
        p.e(f"v_add_u32 v{VW2}, s{S_T2}, v{VW2}")
        if not attn:
            p.e(f"v_lshrrev_b32 v{VW3}, 2, v0")
            p.e(f"v_mul_u32_u24 v{VW3}, {RS}, v{VW3}")
            p.e(f"v_and_b32 v{VT3}, 3, v0")
            p.e(f"v_lshl_add_u32 v{VW3}, v{VT3}, 4, v{VW3}")
            p.e(f"s_lshl_b32 s{S_T2}, s{S_C3}, 1")
            p.e(f"s_add_u32 s{S_T2}, s{S_T2}, s{S_T1}")
            p.e(f"v_add_u32 v{VW3}, s{S_T2}, v{VW3}")
        p.e(f"s_and_b32 s{S_T1}, s{S_M}, 7")
        p.e(f"s_mul_i32 s{S_T1}, s{S_T1}, {64*RS}")
        if attn:
            p.e(f"s_lshl_b32 s{S_T2}, s{S_UNIT}, 7")
        else:
            p.e(f"s_bitcmp1_b32 s{S_LW}, 0")
            p.e(f"s_cselect_b32 s{S_T2}, s{S_C3}, s{S_C2}")
            p.e(f"s_lshl_b32 s{S_T2}, s{S_T2}, 1")
        p.e(f"s_add_u32 s{S_T1}, s{S_T1}, s{S_T2}")
        p.e(f"v_mul_u32_u24 v{VPF}, {RS}, v0")
        p.e(f"v_add_u32 v{VPF}, s{S_T1}, v{VPF}")
        p.e(f"v_lshl_or_b32 v{VB}, v{VT0}, 10, v{VT2}")
        p.e(f"s_lshl_b32 s{S_T1}, s{S_NN}, 7")
        p.e(f"s_lshl_b32 s{S_T2}, s{S_LW}, 14")
        p.e(f"s_add_u32 s{S_T1}, s{S_T1}, s{S_T2}")
        p.e(f"v_add_u32 v{VB}, s{S_T1}, v{VB}")
        p.e(f"s_lshl_b32 s{S_T1}, s{S_MM}, 1")
        p.e(f"s_lshr_b32 s{S_T2}, s{S_LW}, 1")
        p.e(f"s_add_u32 s{S_T1}, s{S_T1}, s{S_T2}")
        p.e(f"s_mul_i32 s{S_T1}, s{S_T1}, {144*1024}")
        p.e(f"s_and_b32 s{S_T2}, s{S_LW}, 1")
        p.e(f"s_lshl_b32 s{S_T2}, s{S_T2}, 11")
        p.e(f"s_add_u32 s{S_AB}, s{S_T1}, s{S_T2}")
        p.e(f"v_and_b32 v{VFO32}, 31, v0")
        p.e(f"v_lshlrev_b32 v{VFO32}, 2, v{VFO32}")
        p.e(f"v_and_b32 v{VFO16}, 15, v0")
        p.e(f"v_lshlrev_b32 v{VFO16}, 2, v{VFO16}")
        p.e(f"s_lshr_b32 s{S_T1}, s{S_MM}, 1")
        p.e(f"s_lshl_b32 s{S_T1}, s{S_T1}, 7")
        p.e(f"s_add_u32 s{S_FO1}, s{S_T1}, {F1}")
        p.e(f"s_lshl_b32 s{S_T1}, s{S_MM}, 7")
        p.e(f"s_add_u32 s{S_FO2}, s{S_T1}, {F2}")
        p.e(f"s_add_u32 s{S_FO3}, s{S_T1}, {F3}")
        if attn:
            p.e(f"s_lshl_b32 s{S_T1}, s{S_UNIT}, 2")
            p.e(f"s_add_u32 s{S_T1}, s{S_T1}, s{S_LW}")
            p.e(f"s_lshl_b32 s{S_T2}, s{S_T1}, 7")
            p.e(f"s_add_u32 s{S_FOK}, s{S_T2}, {FK}")
            p.e(f"s_mul_i32 s{S_T1}, s{S_T1}, {16*1152}")
            p.e(f"s_add_u32 s{S_KVB}, s{S_T1}, {KVP}")
            p.e(f"v_lshrrev_b32 v{VT0}, 5, v0")
            p.e(f"v_and_b32 v{VT1}, 31, v0")
            p.e(f"v_min_u32 v{VT1}, 16, v{VT1}")
            p.e(f"v_mad_u32_u24 v{VKV}, v{VT0}, 17, v{VT1}")
            p.e(f"v_lshlrev_b32 v{VKV}, 4, v{VKV}")
            self.build_sel(p, SEL, VT0, VT1, VT2)

        def a_part(t):
            ln = LINE_ORDER[t]
            dma(VA, SWS, f"s{S_T0}", S_WL2K, (t & 7) * 16384, ("a", t), "sc1", pre=f"s_add_u32 s{S_T0}, s{S_AB}, {ln*4096}")
            p.e(f"buffer_load_dwordx4 v{VA}, {sr(SWS,4)}, s{S_T0} offen offset:1024 sc1 lds", tag=("a", t))

        def b_part(t):
            ln = LINE_ORDER[t]
            srd, row0 = (SW2, 64 * ln) if ln < 28 else (SWO, 64 * (ln - 28))
            for i in range(2):
                dma(VB, srd, f"s{S_T0}", S_WL2K, (t & 7) * 16384 + 8192 + i * 1024, ("b", t), pre=f"s_mov_b32 s{S_T0}, {(row0 + 8*i)*1024}")

        for b in range(32):
            need = [("w", b)]
            if b < 16:
                need += [("x", 2 * (b >> 1)), ("x", 2 * (b >> 1) + 1)]
            p.wait_vm(need)
            p.e("s_barrier")
            if b == 0:
                self.stamp(p, 1)
            if b == 16:
                self.stamp(p, 2)
            if b >= 1:
                g = b + 3
                if g + 1 < 16:
                    xhalf(g + 1)
                if g < 32:
                    wstage(g)
            if b == 6 and c.p2_prefetch:
                lw_lim = 1 if attn else 2
                sk = self.lab("pf")
                p.e(f"s_cmp_ge_u32 s{S_LW}, {lw_lim}")
                p.fence()
                p.e(f"s_cbranch_scc1 {sk}")
                p.raw(f"    buffer_load_dword v{VF}, v{VPF}, {sr(SW1,4)}, 0 offen")
                p.label(sk)
            if b == 12:
                self.nonce_issue(p, VN, VZ)
            if b >= 18 and b % 2 == 0:
                b_part((b - 18) // 2)
            if b == 28:
                self.nonce_get(p, VN, VZ)
            if b == 30:
                self.poll_issue(p, VF, VFO32, S_FO1, "f1")
        p.e("s_barrier")
        self.stamp(p, 3)
        b_part(7)
        self.poll_check(p, VF, VFO32, S_FO1, "f1")
        self.stamp(p, 4)
        nA0 = 8 if attn else c.Alead
        if attn:
            self.poll_issue(p, VF, VFO16, S_FOK, "fk")
        for t in range(nA0):
            a_part(t)
        if attn:
            self.poll_check(p, VF, VFO16, S_FOK, "fk")
            self.stamp(p, 5)
            KVL = 64
            ACC = 32
            for m in range(16):
                if m:
                    p.e(f"s_add_u32 s{S_KVB}, s{S_KVB}, 1152")
                for u in range(2):
                    p.e(f"buffer_load_dwordx4 {vr(KVL+8*m+4*u,4)}, v{VKV}, {sr(SWS,4)}, s{S_KVB} offen offset:{u*34*16} sc1", tag=("kv", m))
            for m in range(16):
                p.wait_vm([("kv", m)])
                for u in range(2):
                    p.e(mfma(ACC, SEL + 4 * u, KVL + 8 * m + 4 * u, None if (m == 0 and u == 0) else ACC))
            for x in self.cvt(48, ACC, 8):
                p.e(x)
            p.e(f"s_add_u32 s{S_T0}, s{S_WL2K}, {RING}")
            p.e(f"v_add_u32 v{VT0}, s{S_T0}, v{VA}")
            p.e(f"ds_write_b128 v{VT0}, {vr(48,4)}")
            p.e(f"ds_write_b128 v{VT0}, {vr(52,4)} offset:1024")
            p.e("s_waitcnt lgkmcnt(0)")
        nextA = nA0
        for t in range(36):
            p.wait_vm([("a", t), ("b", t)])
            p.e("s_barrier")
            if t == 0:
                self.stamp(p, 6)
            if t >= 1 and t + 7 < 36:
                b_part(t + 7)
            while nextA < 36 and nextA <= t + c.Alead:
                if nextA == 16:
                    self.poll_check(p, VF, VFO16, S_FO2, "f2")
                if nextA == 28:
                    self.poll_check(p, VF, VFO16, S_FO3, "f3")
                a_part(nextA)
                nextA += 1
            if t + c.Alead == 16 - 3:
                self.poll_issue(p, VF, VFO16, S_FO2, "f2")
            if t + c.Alead == 28 - 3:
                self.poll_issue(p, VF, VFO16, S_FO3, "f3")
        if c.stamps:
            self.stamp(p, 7)
            self.stamps_out(p, 8, 96)
        p.e("s_endpgm")
        return p

    def build(self):
        progs = [self.prologue(), self.loader(True), self.loader(False), self.compute(False), self.compute(True)]
        nb = {q.name: q.nbar for q in progs[1:]}
        assert len(set(nb.values())) == 1, nb
        hdr = open("gated_mix__linear_kernel_hedgehog__dense_activation_relu__prompt.s.ref").read().split("; Override")[0]
        out = [hdr.rstrip("\n"),
               "; @launch grid=(256,1,1) block=(512,1,1) lds=163840",
               '.amdgcn_target "amdgcn-amd-amdhsa--gfx950"', ".text", f".globl {KNAME}", ".p2align 8",
               f".type {KNAME},@function", f"{KNAME}:"]
        for q in progs:
            out.append(q.text())
            out.append(".p2align 6")
        out.append("L_code_end:")
        out.append('.section .rodata,"a"\n.p2align 6')
        out.append(f".amdhsa_kernel {KNAME}")
        out.append("  .amdhsa_next_free_vgpr 256\n  .amdhsa_next_free_sgpr 102\n  .amdhsa_accum_offset 256\n  .amdhsa_group_segment_fixed_size 0\n  .amdhsa_kernarg_size 88\n  .amdhsa_user_sgpr_count 2\n  .amdhsa_user_sgpr_kernarg_segment_ptr 1\n  .amdhsa_system_sgpr_workgroup_id_x 1")
        out.append(".end_amdhsa_kernel")
        info = {q.name: (len(q.lines), q.nops) for q in progs}
        return "\n".join(out) + "\n", info


def generate(path, **kw):
    cfg = Cfg()
    for k, v in kw.items():
        assert hasattr(cfg, k), k
        setattr(cfg, k, v)
    txt, info = G(cfg).build()
    open(path, "w").write(txt)
    return info


if __name__ == "__main__":
    path = sys.argv[1] if len(sys.argv) > 1 else "gated_mix__linear_kernel_hedgehog__dense_activation_relu__prompt.s"
    kw = {}
    for a in sys.argv[2:]:
        k, v = a.split("=")
        kw[k] = int(v)
    print(generate(path, **kw))
```

```python
import sys
from asmlib import Prog, vr, sr, interleave

KNAME = "gated_mix__linear_kernel_hedgehog__dense_activation_relu__prompt_kernel"


class Cfg:
    rotR = 2
    rotX = 0
    Y1f = 9
    Y1a = 6
    Y2 = 5
    Alead = 4
    stamps = 0
    code_prefetch = 1
    p2_prefetch = 1
    w2_prefetch = 1
    Bstart_f = 5
    Bstart_a = 2
    F1chk_f = 12
    F1chk_a = 5
    pk = 1


ACT = 0
KVP = 0x900000
GP = 0x9A0000
FL = 0x9C0000
F1, F2, F3, FK = FL, FL + 0x1000, FL + 0x2000, FL + 0x3000
STAMPS = 0xA00000
WS_SIZE = 0xB00000
RING = 131072

S_WAVE, S_M, S_ROLE, S_UNIT, S_ROT, S_MM, S_NN, S_LW = 3, 4, 5, 6, 7, 8, 9, 10
S_T0, S_T1, S_T2, S_T3 = 11, 12, 13, 14
S_NONCE = 15
P_X, P_WQKV, P_WPHI, P_WO, P_BX, P_W1, P_W2, P_GATE, P_OUT, P_DBG, P_WS = 16, 18, 20, 22, 24, 26, 28, 30, 32, 34, 36
S_L2E = 38
SX, SW1, SW2, SWO, SWS, SOUT, SPHI = 40, 44, 48, 52, 56, 60, 64
S_KX = 68
S_KW = 76
S_C = 68
S_C1, S_C2, S_C3, S_RS, S_WL1K, S_W1L, S_RS16, S_RS32, S_RS48 = 84, 85, 86, 87, 88, 89, 90, 91, 92
S_CNT = 100
S_T4 = 101

LINE_ORDER = [7 * i + r for i in range(4) for r in (0, 1, 4, 5)] + [7 * i + r for i in range(4) for r in (2, 3, 6)] + [28 + i for i in range(8)]
assert len(LINE_ORDER) == 36

MF = "v_mfma_f32_32x32x16_bf16"
VX, VW1, VW2, VW3, VA, VB = 2, 3, 4, 5, 6, 7
LT0, LT1, LT2, LT3 = 8, 9, 10, 11
VST0, VST1 = 30, 31


def mfma(d, a, b, c):
    cs = "0" if c is None else vr(c, 16)
    return f"{MF} {vr(d,16)}, {vr(a,4)}, {vr(b,4)}, {cs}"


class G:
    def __init__(self, cfg):
        self.c = cfg
        self.uid = 0

    def lab(self, s):
        self.uid += 1
        return f"L_{s}_{self.uid}"

    def stamp(self, p, idx):
        if not self.c.stamps:
            return
        p.e(f"{'s_memtime' if self.c.stamps == 2 else 's_memrealtime'} s[98:99]")
        p.e("s_waitcnt lgkmcnt(0)")
        p.e(f"v_writelane_b32 v{VST0 + idx // 64}, s98, {idx % 64}")

    def stamps_out(self, p):
        if not self.c.stamps:
            return
        p.e(f"s_lshl_b32 s{S_T0}, s2, 3")
        p.e(f"s_add_u32 s{S_T0}, s{S_T0}, s{S_WAVE}")
        p.e(f"s_lshl_b32 s{S_T0}, s{S_T0}, 9")
        p.e(f"s_add_u32 s{S_T0}, s{S_T0}, {STAMPS}")
        p.e(f"v_lshlrev_b32 v1, 2, v0")
        p.e(f"buffer_store_dword v{VST0}, v1, {sr(SWS,4)}, s{S_T0} offen")
        p.e(f"buffer_store_dword v{VST1}, v1, {sr(SWS,4)}, s{S_T0} offen offset:256")

    def prologue(self, p):
        c = self.c
        if c.stamps:
            p.e(f"{'s_memtime' if c.stamps == 2 else 's_memrealtime'} s[96:97]")
        p.e(f"s_load_dwordx16 s[16:31], s[0:1], 0")
        p.e(f"s_load_dwordx4 s[32:35], s[0:1], 64")
        p.e(f"s_load_dwordx2 s[36:37], s[0:1], 80")
        p.e("s_cmp_ge_u32 s2, 256")
        p.e("s_cbranch_scc1 L_exit")
        if c.code_prefetch:
            p.e(f"s_getpc_b64 s[12:13]")
            p.raw("L_pc0:")
            p.e(f"s_lshr_b32 s{S_T0}, s2, 3")
            p.e(f"s_lshl_b32 s{S_T0}, s{S_T0}, 11")
            p.e(f"s_min_u32 s{S_T0}, s{S_T0}, L_code_end-L_pc0-2048")
            p.e(f"v_lshl_add_u32 v2, v0, 2, s{S_T0}")
            p.e(f"global_load_dword v255, v2, s[12:13]", tag="cpf")
        p.e("v_lshrrev_b32 v1, 6, v0")
        p.e("v_and_b32 v0, 63, v0")
        p.e(f"v_readfirstlane_b32 s{S_WAVE}, v1")
        p.e(f"s_lshr_b32 s{S_T1}, s2, 3")
        p.e(f"s_and_b32 s{S_T0}, s2, 7")
        p.e(f"s_and_b32 s{S_M}, s{S_T0}, 1")
        p.e(f"s_lshl_b32 s{S_M}, s{S_M}, 3")
        p.e(f"s_and_b32 s{S_NN}, s{S_T1}, 7")
        p.e(f"s_add_u32 s{S_M}, s{S_M}, s{S_NN}")
        p.e(f"s_lshr_b32 s{S_T2}, s{S_T1}, 3")
        p.e(f"s_lshr_b32 s{S_ROLE}, s{S_T2}, 1")
        p.e(f"s_and_b32 s{S_UNIT}, s{S_T0}, 6")
        p.e(f"s_and_b32 s{S_T3}, s{S_T2}, 1")
        p.e(f"s_add_u32 s{S_UNIT}, s{S_UNIT}, s{S_T3}")
        p.e(f"s_lshl_b32 s{S_MM}, s{S_T0}, 2")
        p.e(f"s_add_u32 s{S_MM}, s{S_MM}, s{S_T2}")
        p.e(f"s_add_u32 s{S_ROT}, s{S_M}, s{S_T2}")
        p.e(f"s_and_b32 s{S_ROT}, s{S_ROT}, {c.rotR-1}")
        p.e(f"s_mul_i32 s{S_ROT}, s{S_ROT}, {8//c.rotR}")
        if c.rotX:
            p.e(f"s_lshr_b32 s{S_T3}, s{S_T0}, 1")
            p.e(f"s_lshl_b32 s{S_T2}, s{S_T0}, 1")
            p.e(f"s_add_u32 s{S_T3}, s{S_T3}, s{S_T2}")
            p.e(f"s_and_b32 s{S_T3}, s{S_T3}, {8//c.rotR-1}")
            p.e(f"s_add_u32 s{S_ROT}, s{S_ROT}, s{S_T3}")
        p.e(f"s_and_b32 s{S_LW}, s{S_WAVE}, 3")
        for s in (SX, SW1, SW2, SWO, SWS, SOUT, SPHI):
            p.e(f"s_mov_b32 s{s+3}, 0x20000")
        p.e(f"s_mov_b32 s{SX+2}, {2048*1024}")
        p.e(f"s_mov_b32 s{SW2+2}, {1792*1024}")
        p.e(f"s_mov_b32 s{SWO+2}, {512*1024}")
        p.e(f"s_mov_b32 s{SWS+2}, {WS_SIZE}")
        p.e(f"s_mov_b32 s{SOUT+2}, {2048*1024}")
        p.e(f"s_mov_b32 s{SPHI+2}, {32*512}")
        p.e(f"s_mul_i32 s{S_T0}, s{S_UNIT}, 224")
        p.e(f"s_bitcmp1_b32 s{S_UNIT}, 0")
        p.e(f"s_cselect_b32 s{S_C1}, 32, 0")
        p.e(f"s_cselect_b32 s{S_C3}, 0, 192")
        p.e(f"s_add_u32 s{S_C1}, s{S_C1}, s{S_T0}")
        p.e(f"s_add_u32 s{S_C2}, s{S_C1}, 128")
        p.e(f"s_add_u32 s{S_C3}, s{S_C3}, s{S_T0}")
        p.e(f"s_lshl_b32 s{S_WL1K}, s{S_LW}, 10")
        p.e(f"v_lshrrev_b32 v{LT0}, 3, v0")
        p.e(f"v_and_b32 v{LT1}, 7, v0")
        p.e(f"v_lshrrev_b32 v{LT2}, 4, v0")
        p.e(f"s_and_b32 s{S_T3}, s{S_LW}, 1")
        p.e(f"s_lshl_b32 s{S_T1}, s{S_T3}, 2")
        p.e(f"v_or_b32 v{LT2}, s{S_T1}, v{LT2}")
        p.e(f"v_xor_b32 v{LT2}, v{LT2}, v{LT1}")
        p.e(f"v_lshlrev_b32 v{LT2}, 4, v{LT2}")
        p.e(f"v_lshl_or_b32 v{VX}, v{LT0}, 10, v{LT2}")
        p.e(f"s_lshl_b32 s{S_T1}, s{S_M}, 17")
        p.e(f"s_lshl_b32 s{S_T2}, s{S_LW}, 13")
        p.e(f"s_add_u32 s{S_T1}, s{S_T1}, s{S_T2}")
        p.e(f"v_add_u32 v{VX}, s{S_T1}, v{VX}")
        p.e(f"s_lshl_b32 s{S_T0}, s{S_UNIT}, 7")
        p.e(f"s_lshl_b32 s{S_T1}, s{S_T3}, 10")
        p.e(f"s_add_u32 s{S_T0}, s{S_T0}, s{S_T1}")
        p.e(f"s_add_u32 s{S_T0}, s{S_T0}, 1024")
        p.e(f"s_lshl_b32 s{S_T1}, s{S_C1}, 1")
        p.e(f"s_lshl_b32 s{S_T2}, s{S_T3}, 7")
        p.e(f"s_add_u32 s{S_T1}, s{S_T1}, s{S_T2}")
        p.e(f"s_mov_b32 s{S_RS}, 3072")
        p.e(f"s_cmp_eq_u32 s{S_ROLE}, 0")
        p.e(f"s_cselect_b32 s{S_T0}, s{S_T0}, s{S_T1}")
        p.e(f"s_cselect_b32 s{S_RS}, s{S_RS}, 3584")
        p.e(f"s_lshl_b32 s{SW1+2}, s{S_RS}, 9")
        p.e(f"v_bfe_u32 v{LT2}, v0, 4, 1")
        p.e(f"v_lshlrev_b32 v{LT2}, 2, v{LT2}")
        p.e(f"v_xor_b32 v{LT2}, v{LT2}, v{LT1}")
        p.e(f"v_lshlrev_b32 v{LT2}, 4, v{LT2}")
        p.e(f"v_mul_u32_u24 v{LT3}, s{S_RS}, v{LT0}")
        p.e(f"s_lshr_b32 s{S_T1}, s{S_LW}, 1")
        p.e(f"s_lshl_b32 s{S_W1L}, s{S_T3}, 12")
        p.e(f"s_lshl_b32 s{S_T2}, s{S_T1}, 10")
        p.e(f"s_add_u32 s{S_W1L}, s{S_W1L}, s{S_T2}")
        p.e(f"s_lshl_b32 s{S_T2}, s{S_T3}, 5")
        p.e(f"v_xor_b32 v{VW1}, s{S_T2}, v{LT2}")
        p.e(f"s_mul_i32 s{S_T1}, s{S_T1}, s{S_RS}")
        p.e(f"s_lshl_b32 s{S_T1}, s{S_T1}, 3")
        p.e(f"s_add_u32 s{S_T1}, s{S_T1}, s{S_T0}")
        p.e(f"v_add3_u32 v{VW1}, v{VW1}, v{LT3}, s{S_T1}")
        p.e(f"s_lshl_b32 s{S_RS16}, s{S_RS}, 4")
        p.e(f"s_lshl_b32 s{S_RS32}, s{S_RS}, 5")
        p.e(f"s_add_u32 s{S_RS48}, s{S_RS16}, s{S_RS32}")
        p.e(f"s_lshl_b32 s{S_T2}, s{S_RS}, 6")
        for q in range(8):
            p.e(f"s_add_u32 s{S_T1}, s{S_ROT}, {q}")
            p.e(f"s_and_b32 s{S_T1}, s{S_T1}, 7")
            p.e(f"s_lshl_b32 s{S_KX+q}, s{S_T1}, 7")
            p.e(f"s_mul_i32 s{S_KW+q}, s{S_T1}, s{S_T2}")
        p.e(f"s_cmp_eq_u32 s{S_ROLE}, 0")
        p.e("s_waitcnt lgkmcnt(0)")
        p.e(f"s_mov_b64 s[{SX}:{SX+1}], s[{P_X}:{P_X+1}]")
        p.e(f"s_cselect_b32 s{SW1}, s{P_WQKV}, s{P_W1}")
        p.e(f"s_cselect_b32 s{SW1+1}, s{P_WQKV+1}, s{P_W1+1}")
        for s, q in ((SW2, P_W2), (SWO, P_WO), (SWS, P_WS), (SOUT, P_OUT), (SPHI, P_WPHI)):
            p.e(f"s_mov_b64 s[{s}:{s+1}], s[{q}:{q+1}]")
        if c.stamps:
            p.e(f"v_writelane_b32 v{VST1}, s96, 63")
        p.e(f"s_cmp_lt_u32 s{S_WAVE}, 4")
        p.fence()
        p.e("s_cbranch_scc1 L_compute")

    def build_sel(self, p, vsel, t0, t1, t2):
        p.e(f"v_and_b32 v{t0}, 1, v0")
        p.e(f"v_lshlrev_b32 v{t0}, 4, v{t0}")
        p.e(f"v_mov_b32 v{t1}, 0x3f80")
        p.e(f"v_lshlrev_b32 v{t0}, v{t0}, v{t1}")
        p.e(f"v_bfe_u32 v{t1}, v0, 2, 1")
        p.e(f"v_lshrrev_b32 v{t2}, 5, v0")
        p.e(f"v_cmp_eq_u32 vcc, v{t1}, v{t2}")
        p.e(f"v_bfe_u32 v{t1}, v0, 3, 2")
        p.e(f"v_bfe_u32 v{t2}, v0, 1, 1")
        p.e(f"v_cndmask_b32 v{t0}, 0, v{t0}, vcc")
        p.e(f"v_lshl_or_b32 v{t1}, v{t1}, 1, v{t2}")
        for q in range(8):
            p.e(f"v_cmp_eq_u32 vcc, {q}, v{t1}")
            p.e(f"v_cndmask_b32 v{vsel+q}, 0, v{t0}, vcc")

    def nonce_issue(self, p, vn, vzero):
        p.e(f"global_load_dword v{vn}, v{vzero}, {sr(P_DBG,2)} sc1", tag="nonce")

    def nonce_get(self, p, vn, vzero):
        p.wait_vm("nonce")
        p.e(f"v_readfirstlane_b32 s{S_NONCE}, v{vn}")
        ok, lp = self.lab("nok"), self.lab("nlp")
        p.e(f"s_cmp_lg_u32 s{S_NONCE}, 0")
        p.fence()
        p.e(f"s_cbranch_scc1 {ok}")
        p.e(f"s_mov_b32 s{S_CNT}, 0")
        p.label(lp)
        p.e("s_sleep 4")
        p.raw(f"    global_load_dword v{vn}, v{vzero}, {sr(P_DBG,2)} sc1")
        p.raw("    s_waitcnt vmcnt(0)")
        p.e(f"v_readfirstlane_b32 s{S_NONCE}, v{vn}")
        p.e(f"s_add_u32 s{S_CNT}, s{S_CNT}, 1")
        p.e(f"s_cmp_ge_u32 s{S_CNT}, 20000")
        p.e(f"s_cbranch_scc1 {ok}")
        p.e(f"s_cmp_eq_u32 s{S_NONCE}, 0")
        p.e(f"s_cbranch_scc1 {lp}")
        p.label(ok)

    def poll_issue(self, p, vf, voff, soff, tag):
        p.e(f"buffer_load_dword v{vf}, v{voff}, {sr(SWS,4)}, s{soff} offen sc1", tag=tag)

    def poll_check(self, p, vf, voff, soff, tag):
        p.wait_vm(tag)
        ok, lp = self.lab("pok"), self.lab("plp")
        p.e(f"v_cmp_ne_u32 vcc, s{S_NONCE}, v{vf}")
        p.e("s_cmp_eq_u64 vcc, 0")
        p.fence()
        p.e(f"s_cbranch_scc1 {ok}")
        p.e(f"s_mov_b32 s{S_CNT}, 0")
        p.label(lp)
        p.e("s_sleep 2")
        p.raw(f"    buffer_load_dword v{vf}, v{voff}, {sr(SWS,4)}, s{soff} offen sc1")
        p.raw("    s_waitcnt vmcnt(0)")
        p.e(f"s_add_u32 s{S_CNT}, s{S_CNT}, 1")
        p.e(f"s_cmp_ge_u32 s{S_CNT}, 20000")
        p.e(f"s_cbranch_scc1 {ok}")
        p.e(f"v_cmp_ne_u32 vcc, s{S_NONCE}, v{vf}")
        p.e("s_cmp_lg_u64 vcc, 0")
        p.e(f"s_cbranch_scc1 {lp}")
        p.label(ok)

    def flag_store(self, p, vtmp, soff):
        p.wait_vm0()
        p.e(f"v_mov_b32 v{vtmp}, s{S_NONCE}")
        p.e("s_mov_b64 exec, 1")
        p.e(f"buffer_store_dword v{vtmp}, off, {sr(SWS,4)}, s{soff} sc1", tag="flag")
        p.e("s_mov_b64 exec, -1")

    def softmax(self, P, out, t):
        a = []
        a.append(f"v_max3_f32 v{t}, v{P}, v{P+1}, v{P+2}")
        a.append(f"v_max3_f32 v{t+1}, v{P+3}, v{P+4}, v{P+5}")
        a.append(f"v_max3_f32 v{t+2}, v{P+6}, v{P+7}, v{P+8}")
        a.append(f"v_max3_f32 v{t+3}, v{P+9}, v{P+10}, v{P+11}")
        a.append(f"v_max3_f32 v{t}, v{t}, v{P+12}, v{P+13}")
        a.append(f"v_max3_f32 v{t+1}, v{t+1}, v{P+14}, v{P+15}")
        a.append(f"v_max3_f32 v{t}, v{t}, v{t+2}, v{t+3}")
        a.append(f"v_max_f32 v{t}, v{t}, v{t+1}")
        a.append(f"v_mul_f32 v{t}, 0xbfb8aa3b, v{t}")
        for i in range(0, 16, 2):
            a.append(f"v_pk_fma_f32 {vr(P+i,2)}, {vr(P+i,2)}, {sr(S_L2E,2)}, {vr(t,2)} op_sel_hi:[1,1,0]")
        b = []
        for i in range(16):
            b.append(f"v_exp_f32 v{P+i}, v{P+i}")
        b.append(f"v_pk_add_f32 {vr(t,2)}, {vr(P,2)}, {vr(P+2,2)}")
        b.append(f"v_pk_add_f32 {vr(t+2,2)}, {vr(P+4,2)}, {vr(P+6,2)}")
        b.append(f"v_pk_add_f32 {vr(t,2)}, {vr(t,2)}, {vr(P+8,2)}")
        b.append(f"v_pk_add_f32 {vr(t+2,2)}, {vr(t+2,2)}, {vr(P+10,2)}")
        b.append(f"v_pk_add_f32 {vr(t,2)}, {vr(t,2)}, {vr(P+12,2)}")
        b.append(f"v_pk_add_f32 {vr(t+2,2)}, {vr(t+2,2)}, {vr(P+14,2)}")
        b.append(f"v_pk_add_f32 {vr(t,2)}, {vr(t,2)}, {vr(t+2,2)}")
        b.append(f"v_add_f32 v{t}, v{t}, v{t+1}")
        b.append(f"v_rcp_f32 v{t}, v{t}")
        for i in range(0, 16, 2):
            b.append(f"v_pk_mul_f32 {vr(P+i,2)}, {vr(P+i,2)}, {vr(t,2)} op_sel_hi:[1,0]")
        for i in range(8):
            b.append(f"v_cvt_pk_bf16_f32 v{out+i}, v{P+2*i}, v{P+2*i+1}")
        return a, b

    @staticmethod
    def cvt(dst, src, n):
        return [f"v_cvt_pk_bf16_f32 v{dst+i}, v{src+2*i}, v{src+2*i+1}" for i in range(n)]

    def compute(self, attn):
        c = self.c
        p = Prog("comp_attn" if attn else "comp_ffn")
        p.raw("L_comp_attn:" if attn else "L_comp_ffn:")
        VXA = 2
        VWA = 6
        VWB0, VWB1, VWH = 7, 8, 9
        VAA, VAA2, VBA, VBA2 = 10, 11, 12, 13
        VL16 = 14
        VT0, VT1, VT2, VT3 = 16, 17, 18, 19
        VZ, VN = 20, 21
        VPH, VSG = 22, 23
        VT4, VT5, VT6, VT7 = 24, 25, 26, 27
        VOUT = 28
        VG = 29
        ACC = 32
        FS = (96, 136)
        WPHI, SEL, CONES, GW = 176, 192, 200, 216
        WH = 120
        NC = 2 if attn else 3
        SF_A, SF_B, SST1, SST2, SST3, SGP = S_C, S_C + 1, S_C + 2, S_C + 3, S_C + 4, S_C + 5

        p.e(f"v_mov_b32 v{VZ}, 0")
        if attn:
            skip = self.lab("nw")
            p.e(f"s_lshl_b32 s{S_T0}, s2, 3")
            p.e(f"s_add_u32 s{S_T0}, s{S_T0}, s{S_WAVE}")
            p.e(f"s_cmp_lg_u32 s{S_T0}, 8")
            p.e(f"s_cbranch_scc1 {skip}")
            p.e(f"s_memrealtime s[94:95]")
            p.e("s_waitcnt lgkmcnt(0)")
            p.e(f"s_or_b32 s{S_T0}, s94, 1")
            p.e(f"v_mov_b32 v{VN}, s{S_T0}")
            p.e("s_mov_b64 exec, 1")
            p.raw(f"    global_store_dword v{VZ}, v{VN}, {sr(P_DBG,2)} sc1")
            p.e("s_mov_b64 exec, -1")
            p.label(skip)
        p.e(f"v_lshlrev_b32 v{VL16}, 4, v0")
        p.e(f"s_mov_b32 s{S_L2E}, 0x3fb8aa3b")
        p.e(f"s_mov_b32 s{S_L2E+1}, 0x3fb8aa3b")
        if attn:
            p.e(f"v_lshrrev_b32 v{VT0}, 5, v0")
            p.e(f"v_lshlrev_b32 v{VT0}, 4, v{VT0}")
            p.e(f"s_lshl_b32 s{S_T0}, s{S_UNIT}, 7")
            p.e(f"v_add_u32 v{VT0}, s{S_T0}, v{VT0}")
            for kk in range(4):
                p.e(f"global_load_dwordx4 {vr(GW+4*kk,4)}, v{VT0}, {sr(P_GATE,2)} offset:{32*kk}", tag="gw")
        p.e(f"v_and_b32 v{VT0}, 31, v0")
        p.e(f"v_lshrrev_b32 v{VT1}, 5, v0")
        p.e(f"v_bfe_u32 v{VT2}, v0, 1, 3")
        p.e(f"v_xor_b32 v{VT2}, v{VT2}, v{VT1}")
        p.e(f"v_lshlrev_b32 v{VT2}, 4, v{VT2}")
        p.e(f"v_lshl_or_b32 v{VXA}, v{VT0}, 7, v{VT2}")
        for kk in range(1, 4):
            p.e(f"v_xor_b32 v{VXA+kk}, {32*kk}, v{VXA}")
        p.e(f"v_bfe_u32 v{VT0}, v0, 2, 2")
        p.e(f"v_lshl_or_b32 v{VT0}, v{VT1}, 3, v{VT0}")
        p.e(f"v_and_b32 v{VT4}, 1, v0")
        p.e(f"v_bfe_u32 v{VT5}, v0, 1, 1")
        p.e(f"v_lshlrev_b32 v{VT1}, 4, v{VT4}")
        p.e(f"v_lshl_or_b32 v{VT1}, v{VT5}, 3, v{VT1}")
        p.e(f"v_bfe_u32 v{VT2}, v0, 4, 1")
        p.e(f"v_bfe_u32 v{VT3}, v0, 3, 1")
        p.e(f"v_lshlrev_b32 v{VT3}, 6, v{VT3}")
        if attn:
            p.e(f"s_lshl_b32 s{S_T0}, s{S_LW}, 5")
            p.e(f"v_add_u32 v{VT6}, s{S_T0}, v{VT1}")
            p.e(f"v_lshl_or_b32 v{VT7}, v{VT2}, 5, v{VT3}")
            p.e(f"v_xor_b32 v{VT6}, v{VT6}, v{VT7}")
            p.e(f"v_lshl_or_b32 v{VT6}, v{VT2}, 12, v{VT6}")
            p.e(f"v_lshl_add_u32 v{VT6}, v{VT0}, 7, v{VT6}")
            p.e(f"v_add_u32 v{VWA}, {RING}, v{VT6}")
        else:
            p.e(f"s_and_b32 s{S_T0}, s{S_LW}, 1")
            p.e(f"s_lshl_b32 s{S_T0}, s{S_T0}, 6")
            p.e(f"s_lshr_b32 s{S_T1}, s{S_LW}, 1")
            p.e(f"s_lshl_b32 s{S_T2}, s{S_T1}, 5")
            p.e(f"s_xor_b32 s{S_T0}, s{S_T0}, s{S_T2}")
            p.e(f"s_lshl_b32 s{S_T1}, s{S_T1}, 12")
            p.e(f"s_add_u32 s{S_T1}, s{S_T1}, {RING}")
            p.e(f"v_lshl_or_b32 v{VT6}, v{VT2}, 5, v{VT1}")
            p.e(f"v_xor_b32 v{VT6}, v{VT6}, v{VT3}")
            p.e(f"v_xor_b32 v{VT6}, s{S_T0}, v{VT6}")
            p.e(f"v_lshl_add_u32 v{VT6}, v{VT0}, 7, v{VT6}")
            p.e(f"v_add_u32 v{VWA}, s{S_T1}, v{VT6}")
        p.e(f"v_lshl_or_b32 v{VT6}, v{VT2}, 5, v{VT1}")
        p.e(f"v_xor_b32 v{VT7}, v{VT6}, v{VT3}")
        p.e(f"v_lshl_add_u32 v{VT7}, v{VT0}, 7, v{VT7}")
        p.e(f"v_add_u32 v{VWB0}, {RING}, v{VT7}")
        p.e(f"v_xor_b32 v{VWB1}, 64, v{VWB0}")
        p.e(f"v_lshl_add_u32 v{VT7}, v{VT0}, 6, v{VT6}")
        p.e(f"v_add_u32 v{VWH}, {RING+4096}, v{VT7}")
        p.e(f"s_lshr_b32 s{S_T0}, s{S_LW}, 1")
        p.e(f"s_lshl_b32 s{S_T0}, s{S_T0}, 12")
        p.e(f"v_add_u32 v{VAA}, s{S_T0}, v{VL16}")
        p.e(f"v_add_u32 v{VAA2}, 0x10000, v{VAA}")
        p.e(f"v_lshlrev_b32 v{VT6}, 5, v{VT4}")
        p.e(f"v_lshl_or_b32 v{VT6}, v{VT2}, 4, v{VT6}")
        p.e(f"v_lshl_or_b32 v{VT6}, v{VT5}, 3, v{VT6}")
        p.e(f"v_xor_b32 v{VT6}, v{VT6}, v{VT3}")
        p.e(f"s_and_b32 s{S_T0}, s{S_LW}, 1")
        p.e(f"s_lshl_b32 s{S_T0}, s{S_T0}, 6")
        p.e(f"v_xor_b32 v{VT6}, s{S_T0}, v{VT6}")
        p.e(f"v_lshl_add_u32 v{VT6}, v{VT0}, 7, v{VT6}")
        p.e(f"v_add_u32 v{VBA}, 8192, v{VT6}")
        p.e(f"v_add_u32 v{VBA2}, 0x10000, v{VBA}")
        p.e(f"v_and_b32 v{VT6}, 31, v0")
        p.e(f"v_lshrrev_b32 v{VT7}, 5, v0")
        p.e(f"v_lshlrev_b32 v{VT7}, 5, v{VT7}")
        p.e(f"v_lshl_or_b32 v{VOUT}, v{VT6}, 10, v{VT7}")
        p.e(f"s_lshl_b32 s{S_T1}, s{S_MM}, 1")
        p.e(f"s_lshr_b32 s{S_T2}, s{S_LW}, 1")
        p.e(f"s_add_u32 s{S_T1}, s{S_T1}, s{S_T2}")
        p.e(f"s_lshl_b32 s{S_T2}, s{S_T1}, 15")
        p.e(f"s_lshl_b32 s{S_T3}, s{S_NN}, 7")
        p.e(f"s_add_u32 s{S_T2}, s{S_T2}, s{S_T3}")
        p.e(f"s_add_u32 s{S_T2}, s{S_T2}, s{S_T0}")
        p.e(f"v_add_u32 v{VOUT}, s{S_T2}, v{VOUT}")
        p.e(f"s_lshr_b32 s{S_T2}, s{S_T1}, 2")
        p.e(f"s_lshl_b32 s{S_T2}, s{S_T2}, 12")
        p.e(f"s_and_b32 s{S_T3}, s{S_T1}, 3")
        p.e(f"s_lshl_b32 s{S_T3}, s{S_T3}, 7")
        p.e(f"s_add_u32 s{S_T2}, s{S_T2}, s{S_T3}")
        p.e(f"s_add_u32 s{S_T2}, s{S_T2}, {GP}")
        p.e(f"v_lshl_add_u32 v{VG}, v{VT6}, 2, s{S_T2}")
        p.e(f"s_lshl_b32 s{S_T1}, s{S_M}, 1")
        p.e(f"s_lshr_b32 s{S_T2}, s{S_LW}, 1")
        p.e(f"s_add_u32 s{S_T1}, s{S_T1}, s{S_T2}")
        p.e(f"s_lshl_b32 s{S_T1}, s{S_T1}, 7")
        p.e(f"s_lshl_b32 s{S_T2}, s{S_UNIT}, 3")
        p.e(f"s_and_b32 s{S_T3}, s{S_LW}, 1")
        p.e(f"s_lshl_b32 s{S_T3}, s{S_T3}, 2")
        p.e(f"s_add_u32 s{S_T1}, s{S_T1}, s{S_T2}")
        p.e(f"s_add_u32 s{S_T1}, s{S_T1}, s{S_T3}")
        p.e(f"s_add_u32 s{SF_B}, s{S_T1}, {F3 if attn else F2}")
        p.e(f"s_mul_i32 s{S_T4}, s{S_M}, {4*144*1024}")
        if attn:
            p.e(f"s_lshl_b32 s{S_T1}, s{S_UNIT}, 2")
            p.e(f"s_add_u32 s{S_T1}, s{S_T1}, s{S_LW}")
            p.e(f"s_lshl_b32 s{S_T2}, s{S_T1}, 7")
            p.e(f"s_lshl_b32 s{S_T3}, s{S_M}, 2")
            p.e(f"s_add_u32 s{S_T2}, s{S_T2}, s{S_T3}")
            p.e(f"s_add_u32 s{SF_A}, s{S_T2}, {FK}")
            p.e(f"s_lshl_b32 s{S_T1}, s{S_T1}, 4")
            p.e(f"s_add_u32 s{S_T1}, s{S_T1}, s{S_M}")
            p.e(f"s_mul_i32 s{S_T1}, s{S_T1}, 1152")
            p.e(f"s_add_u32 s{SST1}, s{S_T1}, {KVP}")
            p.e(f"s_mul_i32 s{S_T1}, s{S_LW}, {144*1024}")
            p.e(f"s_lshl_b32 s{S_T2}, s{S_UNIT}, 12")
            p.e(f"s_add_u32 s{S_T1}, s{S_T1}, s{S_T2}")
            p.e(f"s_add_u32 s{S_T1}, s{S_T1}, s{S_T4}")
            p.e(f"s_add_u32 s{SST2}, s{S_T1}, {112*1024}")
            p.e(f"s_lshl_b32 s{S_T1}, s{S_M}, 3")
            p.e(f"s_add_u32 s{S_T1}, s{S_T1}, s{S_UNIT}")
            p.e(f"s_lshl_b32 s{S_T1}, s{S_T1}, 9")
            p.e(f"s_lshl_b32 s{S_T2}, s{S_LW}, 7")
            p.e(f"s_add_u32 s{S_T1}, s{S_T1}, s{S_T2}")
            p.e(f"s_add_u32 s{SGP}, s{S_T1}, {GP}")
            p.e(f"s_sub_u32 s{S_T1}, s{S_UNIT}, s{S_ROT}")
            p.e(f"s_and_b32 s{S_T1}, s{S_T1}, 7")
            p.e(f"s_lshl_b32 s{SST3}, s{S_T1}, 14")
            p.e(f"v_lshlrev_b32 v{VT6}, 4, v{VT2}")
            p.e(f"v_lshl_or_b32 v{VT6}, v{VT5}, 3, v{VT6}")
            p.e(f"v_lshl_add_u32 v{VT6}, v{VT0}, 5, v{VT6}")
            p.e(f"v_add_u32 v{VPH}, {7*16384}, v{VT6}")
            p.e(f"s_lshl_b32 s{S_T1}, s{S_LW}, 9")
            p.e(f"v_add_u32 v15, s{S_T1}, v{VPH}")
            p.e(f"v_bfe_u32 v{VT6}, v0, 2, 1")
            p.e(f"v_cmp_eq_u32 vcc, 1, v{VT6}")
            p.e(f"v_mov_b32 v{VT7}, 0x80008000")
            p.e(f"v_bfe_u32 v{VT6}, v0, 4, 1")
            p.e(f"v_cndmask_b32 v{VSG}, 0, v{VT7}, vcc")
            p.e(f"v_cvt_f32_u32 v{CONES}, v{VT6}")
            self.build_sel(p, SEL, VT4, VT5, VT6)
            for i in range(1, 16):
                p.e(f"v_mov_b32 v{CONES+i}, v{CONES}")
        else:
            p.e(f"s_lshl_b32 s{S_T1}, s{S_M}, 7")
            p.e(f"s_lshl_b32 s{S_T2}, s{S_UNIT}, 4")
            p.e(f"s_lshl_b32 s{S_T3}, s{S_LW}, 2")
            p.e(f"s_add_u32 s{S_T1}, s{S_T1}, s{S_T2}")
            p.e(f"s_add_u32 s{S_T1}, s{S_T1}, s{S_T3}")
            p.e(f"s_add_u32 s{SF_A}, s{S_T1}, {F1}")
            p.e(f"s_lshl_b32 s{S_T1}, s{S_LW}, 5")
            p.e(f"s_add_u32 s{S_T1}, s{S_T1}, s{S_C1}")
            p.e(f"s_lshl_b32 s{S_T1}, s{S_T1}, 6")
            p.e(f"s_add_u32 s{SST1}, s{S_T1}, s{S_T4}")
            p.e(f"s_mul_i32 s{S_T1}, s{S_LW}, {144*1024}")
            p.e(f"s_add_u32 s{S_T1}, s{S_T1}, s{S_T4}")
            p.e(f"s_lshl_b32 s{S_T2}, s{S_C2}, 6")
            p.e(f"s_add_u32 s{SST2}, s{S_T1}, s{S_T2}")
            p.e(f"s_lshl_b32 s{S_T2}, s{S_C3}, 6")
            p.e(f"s_add_u32 s{SST3}, s{S_T1}, s{S_T2}")
        self.stamp(p, 100)

        def p1_reads(g):
            f = FS[g & 1]
            ch = g >> 1
            xs, ws = [], []
            for k2 in range(2):
                kk = 2 * (g & 1) + k2
                for rb in range(4):
                    xs.append(f"ds_read_b128 {vr(f+20*k2+4*rb,4)}, v{VXA+kk} offset:{(ch&3)*16384 + rb*4096}")
                for rd in range(2):
                    ws.append(f"ds_read_b64_tr_b16 {vr(f+20*k2+16+2*rd,2)}, v{VWA} offset:{(g&3)*8192 + (16*k2+4*rd)*128}")
            out = []
            for i in range(4):
                out += [xs[2 * i], xs[2 * i + 1], ws[i]]
            return out

        def p1_mfma(g):
            f = FS[g & 1]
            out = []
            for k2 in range(2):
                for rb in range(4):
                    out.append(mfma(ACC + 16 * rb, f + 20 * k2 + 16, f + 20 * k2 + 4 * rb, None if (g == 0 and k2 == 0) else ACC + 16 * rb))
            return out

        def p2_reads(i):
            f = FS[i & 1]
            ch = i >> 1
            out = []
            st = 4 + 4 * NC
            for k2 in range(2):
                kk = 2 * (i & 1) + k2
                out.append(f"ds_read_b128 {vr(f+st*k2,4)}, v{VXA+kk} offset:{(ch&3)*16384}")
                for cb in range(NC):
                    for rd in range(2):
                        if cb < 2:
                            out.append(f"ds_read_b64_tr_b16 {vr(f+st*k2+4+4*cb+2*rd,2)}, v{VWB0+cb} offset:{(i&3)*8192 + (16*k2+4*rd)*128}")
                        else:
                            out.append(f"ds_read_b64_tr_b16 {vr(f+st*k2+4+4*cb+2*rd,2)}, v{VWH} offset:{(i&3)*8192 + (16*k2+4*rd)*64}")
            return out

        def p2_mfma(i):
            f = FS[i & 1]
            st = 4 + 4 * NC
            out = []
            for k2 in range(2):
                for cb in range(NC):
                    out.append(mfma(ACC + 16 * cb, f + st * k2 + 4 + 4 * cb, f + st * k2, None if (i == 0 and k2 == 0) else ACC + 16 * cb))
            return out

        def ph2_reads(t):
            f = FS[t & 1]
            sl = t & 7
            va, vb = (VAA, VBA) if sl < 4 else (VAA2, VBA2)
            out = []
            for kb in range(4):
                out.append(f"ds_read_b128 {vr(f+8*kb,4)}, v{va} offset:{(sl&3)*16384 + kb*1024}")
                for rd in range(2):
                    out.append(f"ds_read_b64_tr_b16 {vr(f+8*kb+4+2*rd,2)}, v{vb} offset:{(sl&3)*16384 + (16*kb+4*rd)*128}")
            return out

        def ph2_mfma(t):
            f = FS[t & 1]
            acc = ACC if t < 28 else ACC + 16
            out = []
            for kb in range(4):
                first = (t in (0, 28)) and kb == 0
                out.append(mfma(acc, f + 8 * kb + 4, f + 8 * kb, None if first else acc))
            return out

        def bar(first=False):
            if not first:
                p.e("s_waitcnt lgkmcnt(0)")
            p.e("s_barrier")

        def emit(lst):
            for x in lst:
                p.e(x)

        def relu_store(t, src, so, off, tag):
            emit(self.cvt(t, src, 8))
            for i in range(8):
                p.e(f"v_pk_max_i16 v{t+i}, v{t+i}, 0")
            p.e(f"buffer_store_dwordx4 {vr(t,4)}, v{VL16}, {sr(SWS,4)}, s{so} offen offset:{off} sc1", tag=tag)
            p.e(f"buffer_store_dwordx4 {vr(t+4,4)}, v{VL16}, {sr(SWS,4)}, s{so} offen offset:{off+1024} sc1", tag=tag)

        WHT = 232
        for g in range(16):
            bar(g == 0)
            if g == 8:
                for kk in range(4):
                    p.e(f"v_add_u32 v{VXA+kk}, 0x10000, v{VXA+kk}")
            if g == 13:
                self.nonce_issue(p, VN, VZ)
            rd = p1_reads(g)
            if g == 0:
                emit(rd)
                if attn:
                    for h in range(4):
                        for r2 in range(2):
                            p.e(f"ds_read_b64_tr_b16 {vr(WPHI+4*h+2*r2,2)}, v{VPH} offset:{h*512 + r2*128}")
                    p.e("s_waitcnt lgkmcnt(8)")
                    for r2 in range(2):
                        p.e(f"ds_read_b64_tr_b16 {vr(VT4+2*r2,2)}, v15 offset:{r2*128}")
            else:
                emit(interleave(p1_mfma(g - 1), rd, 3))
            if g == 1 and attn:
                for i in range(16):
                    p.e(f"v_xor_b32 v{WPHI+i}, v{WPHI+i}, v{VSG}")
                for i in range(4):
                    p.e(f"v_xor_b32 v{VT4+i}, v{VT4+i}, v{VSG}")
        bar()
        self.stamp(p, 101)
        p.e(f"s_lshl_b32 s{S_T0}, s{S_LW}, 12")
        p.e(f"s_sub_u32 s{S_T0}, s{S_T0}, 0x10000")
        adj = [f"v_add_u32 v{VXA+kk}, s{S_T0}, v{VXA+kk}" for kk in range(4)]
        emit(interleave(p1_mfma(15), adj, 1))

        def start_p2():
            bar()
            emit(p2_reads(0))
        if attn:
            self.epi1_attn(p, ACC, VT4, SEL, CONES, GW, VXA, SST1, SGP, SST3, (VT0, VT1, VT2, VT3), start_p2)
        else:
            T = 176
            for rb in range(4):
                if rb == 3:
                    start_p2()
                if rb:
                    p.e(f"s_add_u32 s{SST1}, s{SST1}, {144*1024}")
                relu_store(T + 8 * rb, ACC + 16 * rb, SST1, 0, "h1")
        self.stamp(p, 102)
        for i in range(1, 16):
            bar()
            if i == 8:
                for kk in range(4):
                    p.e(f"v_add_u32 v{VXA+kk}, 0x10000, v{VXA+kk}")
            emit(interleave(p2_mfma(i - 1), p2_reads(i), 3))
            if i == (c.Y1a if attn else c.Y1f):
                self.stamp(p, 103)
                self.nonce_get(p, VN, VZ)
                self.flag_store(p, VT0, SF_A)
                self.stamp(p, 104)
        bar()
        self.stamp(p, 105)
        emit(p2_mfma(15))
        PHIQ = 200
        if attn:
            QB = 232
            for cb in range(2):
                emit(self.cvt(QB + 8 * cb, ACC + 16 * cb, 8))
            PB = (64, 80)
            p.e(mfma(PB[0], WPHI, QB, None))
            p.e(mfma(PB[1], WPHI + 4, QB + 4, None))
            for h in range(4):
                a, b = self.softmax(PB[h & 1], PHIQ + 8 * h, VT0)
                emit(a + b)
                if h + 2 < 4:
                    p.e(mfma(PB[h & 1], WPHI + 4 * (h + 2), QB + 4 * (h + 2), None))
        else:
            T = 176
            for cb in range(3):
                so, off = (SST2, 2048 * cb) if cb < 2 else (SST3, 0)
                relu_store(T + 8 * cb, ACC + 16 * cb, so, off, "h2")
        self.stamp(p, 106)
        GPV = 64
        for t in range(36):
            bar()
            if t == 0:
                self.stamp(p, 107)
                emit(ph2_reads(0))
                if attn:
                    KZ = (176, 184, 192, 232)
                    p.e(f"v_add_u32 v{VT0}, {RING}, v{VL16}")
                    p.e("s_waitcnt lgkmcnt(4)")
                    for h in range(4):
                        for u in range(2):
                            p.e(f"ds_read_b128 {vr(KZ[h]+4*u,4)}, v{VT0} offset:{h*2048+u*1024}")
                    p.e("s_waitcnt lgkmcnt(0)")
                    NB = (64, 80)
                    OP = 240

                    def nm(h):
                        p.e(mfma(NB[h & 1], KZ[h], PHIQ + 8 * h, None))
                        p.e(mfma(NB[h & 1], KZ[h] + 4, PHIQ + 8 * h + 4, NB[h & 1]))
                    nm(0)
                    nm(1)
                    for h in range(4):
                        N = NB[h & 1]
                        p.e(f"v_add_f32 v{VT2}, 0x358637bd, v{N+8}")
                        p.e(f"v_rcp_f32 v{VT2}, v{VT2}")
                        for i in range(0, 8, 2):
                            p.e(f"v_pk_mul_f32 {vr(N+i,2)}, {vr(N+i,2)}, {vr(VT2,2)} op_sel_hi:[1,0]")
                        emit(self.cvt(OP + 4 * h, N, 4))
                        p.e(f"buffer_store_dwordx4 {vr(OP+4*h,4)}, v{VL16}, {sr(SWS,4)}, s{SST2} offen offset:{h*1024} sc1", tag="o")
                        if h + 2 < 4:
                            nm(h + 2)
                    self.stamp(p, 108)
            else:
                emit(interleave(ph2_mfma(t - 1), ph2_reads(t), 3))
            if t == c.Y2:
                self.stamp(p, 109)
                self.flag_store(p, VT0, SF_B)
                self.stamp(p, 110)
            if t == 33:
                for hg in range(8):
                    p.e(f"buffer_load_dword v{GPV+hg}, v{VG}, {sr(SWS,4)}, 0 offen offset:{hg*512} sc1", tag="gp")
        p.e("s_waitcnt lgkmcnt(0)")
        emit(ph2_mfma(35))
        self.stamp(p, 111)
        p.wait_vm("gp")
        for i in range(4):
            p.e(f"v_add_f32 v{GPV+i}, v{GPV+i}, v{GPV+4+i}")
        p.e(f"v_add_f32 v{GPV}, v{GPV}, v{GPV+1}")
        p.e(f"v_add_f32 v{GPV+2}, v{GPV+2}, v{GPV+3}")
        p.e(f"v_add_f32 v{GPV}, v{GPV}, v{GPV+2}")
        p.e(f"v_mul_f32 v{GPV}, 0xbfb8aa3b, v{GPV}")
        p.e(f"v_exp_f32 v{GPV}, v{GPV}")
        p.e(f"v_add_f32 v{GPV}, 1.0, v{GPV}")
        p.e(f"v_rcp_f32 v{GPV}, v{GPV}")
        p.e(f"v_sub_f32 v{GPV+2}, 1.0, v{GPV}")
        for i in range(0, 16, 2):
            p.e(f"v_pk_mul_f32 {vr(ACC+i,2)}, {vr(ACC+i,2)}, {vr(GPV+2,2)} op_sel_hi:[1,0]")
        for i in range(0, 16, 2):
            p.e(f"v_pk_fma_f32 {vr(ACC+i,2)}, {vr(ACC+16+i,2)}, {vr(GPV,2)}, {vr(ACC+i,2)} op_sel_hi:[1,0,1]")
        emit(self.cvt(80, ACC, 8))
        p.e(f"buffer_store_dwordx4 {vr(80,4)}, v{VOUT}, {sr(SOUT,4)}, 0 offen", tag="out")
        p.e(f"buffer_store_dwordx4 {vr(84,4)}, v{VOUT}, {sr(SOUT,4)}, 0 offen offset:16", tag="out")
        if c.stamps:
            self.stamp(p, 112)
            p.wait_vm0()
            self.stamp(p, 113)
            self.stamps_out(p)
        p.e("s_endpgm")
        return p

    def epi1_attn(self, p, ACC, WH, SEL, CONES, GW, VXA, SKV, SGP, SGCH, T, start_p2):
        def emit(lst):
            for x in lst:
                p.e(x)
        KVB = 136
        PHI = 168
        VNP = 248
        PTP = 128
        KV = 232
        PB = (32, 48)
        VN, PT = 64, 80
        XG = 120
        GX = 96
        for kk in range(4):
            p.e(f"v_add_u32 v{T[kk]}, s{SGCH}, v{VXA+kk}")
            p.e(f"ds_read_b128 {vr(GX+4*kk,4)}, v{T[kk]}")
        p.e(f"v_lshlrev_b32 v{XG}, 2, v0")
        for rb in range(4):
            emit(self.cvt(KVB + 8 * rb, ACC + 16 * rb, 8))
            if rb == 1:
                p.e(mfma(PB[0], WH, KVB, None))
                p.e(mfma(PB[1], WH, KVB + 8, None))
        p.wait_vm("gw")
        p.e("s_waitcnt lgkmcnt(0)")
        for kk in range(4):
            p.e(mfma(PT, GW + 4 * kk, GX + 4 * kk, None if kk == 0 else PT))
        p.e(mfma(VN, KVB + 4, SEL, CONES))
        a, b = self.softmax(PB[0], PHI, T[0])
        emit(a)
        p.e("s_mov_b32 exec_hi, 0")
        p.e(f"buffer_store_dword v{PT}, v{XG}, {sr(SWS,4)}, s{SGP} offen sc1", tag="gps")
        p.e("s_mov_b64 exec, -1")
        emit(b)
        for rb in range(4):
            p.e(mfma(PT, PHI, SEL, None))
            p.e(mfma(PT, PHI + 4, SEL + 4, PT))
            if rb + 2 < 4:
                p.e(mfma(PB[rb & 1], WH, KVB + 8 * (rb + 2), None))
            emit(self.cvt(VNP, VN, 8))
            if rb + 1 < 4:
                p.e(mfma(VN, KVB + 8 * (rb + 1) + 4, SEL, CONES))
                a, b = self.softmax(PB[(rb + 1) & 1], PHI, T[0])
                emit(a)
            else:
                start_p2()
                p.e(f"v_lshrrev_b32 v{T[0]}, 5, v0")
                p.e(f"v_and_b32 v{T[1]}, 31, v0")
                p.e(f"v_mad_u32_u24 v{T[0]}, v{T[0]}, 17, v{T[1]}")
                p.e(f"v_lshlrev_b32 v{T[0]}, 4, v{T[0]}")
            emit(self.cvt(PTP, PT, 8))
            p.e(mfma(KV, PTP, VNP, None if rb == 0 else KV))
            p.e(mfma(KV, PTP + 4, VNP + 4, KV))
            if rb + 1 < 4:
                emit(b)
        emit(self.cvt(PTP, KV, 8))
        p.e("s_mov_b32 exec_lo, 0x1ffff")
        p.e("s_mov_b32 exec_hi, 0x1ffff")
        p.e(f"buffer_store_dwordx4 {vr(PTP,4)}, v{T[0]}, {sr(SWS,4)}, s{SKV} offen sc1", tag="kvs")
        p.e(f"buffer_store_dwordx4 {vr(PTP+4,4)}, v{T[0]}, {sr(SWS,4)}, s{SKV} offen offset:{34*16} sc1", tag="kvs")
        p.e("s_mov_b64 exec, -1")

    def dma(self, p, v, srd, soff, m0s, m0c, tag, extra="", pre=None):
        p.e(f"s_add_u32 m0, s{m0s}, {m0c}")
        if pre:
            p.e(pre)
        p.e(f"buffer_load_dwordx4 v{v}, {sr(srd,4)}, {soff} offen {extra} lds".replace("  ", " "), tag=tag)

    def xhalf(self, p, hf):
        q = hf >> 1
        for i in range(2):
            ro = 64 * (hf & 1) + 32 * i
            self.dma(p, VX, SX, f"s{S_T0}", S_WL1K, q * 16384 + ro * 128, ("x", hf), pre=f"s_add_u32 s{S_T0}, s{S_KX+q}, {ro*1024}")

    def w1stage(self, p, g):
        q = g >> 1
        slot = RING + (g & 3) * 8192
        for i in range(2):
            ro = 2 * (g & 1) + i
            src = ("0", f"s{S_RS16}", f"s{S_RS32}", f"s{S_RS48}")[ro]
            self.dma(p, VW1, SW1, f"s{S_T0}", S_W1L, slot + i * 2048, ("w", g), pre=f"s_add_u32 s{S_T0}, s{S_KW+q}, {src}")

    VZ, VN, VF, VFO32, VFO16, VKV, VPF, VPF2 = 12, 13, 14, 15, 16, 17, 18, 19
    LSEL = 192
    S_WL2K, S_AB, S_FO1, S_FO2, S_FO3, S_FOK, S_KVB, S_WL512 = 25, 18, 20, 21, 22, 23, 26, 16

    def loader_common(self, p):
        c = self.c
        self.stamp(p, 114)
        self.xhalf(p, 0)
        self.xhalf(p, 1)
        self.w1stage(p, 0)
        p.e(f"s_lshl_b32 s{self.S_WL512}, s{S_LW}, 9")
        p.e(f"v_lshlrev_b32 v{VA}, 4, v0")
        p.e(f"s_lshl_b32 s{S_T0}, s{S_UNIT}, 11")
        p.e(f"s_add_u32 s{S_T0}, s{S_T0}, s{self.S_WL512}")
        self.dma(p, VA, SPHI, f"s{S_T0}", self.S_WL512, 7 * 16384, ("w", 0), pre="s_mov_b32 exec_hi, 0")
        p.e("s_mov_b64 exec, -1")
        self.xhalf(p, 2)
        self.w1stage(p, 1)
        self.stamp(p, 115)
        VZ, VFO32, VFO16, VKV, VPF, VPF2 = self.VZ, self.VFO32, self.VFO16, self.VKV, self.VPF, self.VPF2
        p.e(f"v_mov_b32 v{VZ}, 0")
        p.e(f"s_lshl_b32 s{self.S_WL2K}, s{S_LW}, 11")
        p.e(f"s_lshl_b32 s{S_T2}, s{S_UNIT}, 7")
        p.e(f"s_lshl_b32 s{S_T3}, s{S_C2}, 1")
        p.e(f"s_lshl_b32 s{S_T4}, s{S_C3}, 1")
        p.e(f"s_cmp_eq_u32 s{S_ROLE}, 0")
        p.e(f"s_cselect_b32 s{S_T3}, s{S_T2}, s{S_T3}")
        p.e(f"s_cselect_b32 s{S_T4}, s{S_T2}, s{S_T4}")
        p.e(f"s_mul_i32 s{S_T1}, s{S_LW}, s{S_RS}")
        p.e(f"s_lshl_b32 s{S_T1}, s{S_T1}, 3")
        p.e(f"s_add_u32 s{S_T2}, s{S_T3}, s{S_T1}")
        p.e(f"v_add3_u32 v{VW2}, v{LT2}, v{LT3}, s{S_T2}")
        p.e(f"v_lshrrev_b32 v{VW3}, 2, v0")
        p.e(f"v_mul_u32_u24 v{VW3}, s{S_RS}, v{VW3}")
        p.e(f"v_and_b32 v{LT3}, 3, v0")
        p.e(f"v_lshl_add_u32 v{VW3}, v{LT3}, 4, v{VW3}")
        p.e(f"s_add_u32 s{S_T2}, s{S_T4}, s{S_T1}")
        p.e(f"v_add_u32 v{VW3}, s{S_T2}, v{VW3}")
        p.e(f"v_and_b32 v{VFO16}, 15, v0")
        p.e(f"s_and_b32 s{S_T1}, s{S_M}, 7")
        p.e(f"s_lshl_b32 s{S_T1}, s{S_T1}, 6")
        p.e(f"s_lshl_b32 s{S_T2}, s{S_LW}, 4")
        p.e(f"s_add_u32 s{S_T1}, s{S_T1}, s{S_T2}")
        p.e(f"v_add_u32 v{VPF}, s{S_T1}, v{VFO16}")
        p.e(f"v_mul_u32_u24 v{VPF}, s{S_RS}, v{VPF}")
        p.e(f"v_mov_b32 v{LT1}, s{S_T3}")
        p.e(f"v_mov_b32 v{LT3}, s{S_T4}")
        p.e(f"v_cmp_gt_u32 vcc, 16, v0")
        p.e(f"v_lshlrev_b32 v{VFO16}, 2, v{VFO16}")
        p.e(f"v_and_b32 v{VFO32}, 31, v0")
        p.e(f"v_cndmask_b32 v{LT1}, v{LT3}, v{LT1}, vcc")
        p.e(f"v_add_u32 v{VPF}, v{VPF}, v{LT1}")
        p.e(f"v_lshlrev_b32 v{VFO32}, 2, v{VFO32}")
        p.e(f"s_lshl_b32 s{S_T1}, s{S_M}, 3")
        p.e(f"s_add_u32 s{S_T1}, s{S_T1}, s{S_UNIT}")
        p.e(f"s_lshl_b32 s{S_T1}, s{S_T1}, 2")
        p.e(f"s_add_u32 s{S_T1}, s{S_T1}, s{S_LW}")
        p.e(f"s_lshl_b32 s{S_T1}, s{S_T1}, 7")
        p.e(f"v_lshl_add_u32 v{VPF2}, v0, 16, s{S_T1}")
        p.e(f"v_lshl_or_b32 v{VB}, v{LT0}, 10, v{LT2}")
        p.e(f"s_lshl_b32 s{S_T1}, s{S_NN}, 7")
        p.e(f"s_lshl_b32 s{S_T2}, s{S_LW}, 14")
        p.e(f"s_add_u32 s{S_T1}, s{S_T1}, s{S_T2}")
        p.e(f"v_add_u32 v{VB}, s{S_T1}, v{VB}")
        p.e(f"s_lshl_b32 s{S_T1}, s{S_MM}, 1")
        p.e(f"s_lshr_b32 s{S_T2}, s{S_LW}, 1")
        p.e(f"s_add_u32 s{S_T1}, s{S_T1}, s{S_T2}")
        p.e(f"s_mul_i32 s{S_T1}, s{S_T1}, {144*1024}")
        p.e(f"s_and_b32 s{S_T2}, s{S_LW}, 1")
        p.e(f"s_lshl_b32 s{S_T2}, s{S_T2}, 11")
        p.e(f"s_add_u32 s{self.S_AB}, s{S_T1}, s{S_T2}")
        p.e(f"s_lshr_b32 s{S_T1}, s{S_MM}, 1")
        p.e(f"s_lshl_b32 s{S_T1}, s{S_T1}, 7")
        p.e(f"s_add_u32 s{self.S_FO1}, s{S_T1}, {F1}")
        p.e(f"s_lshl_b32 s{S_T1}, s{S_MM}, 7")
        p.e(f"s_add_u32 s{self.S_FO2}, s{S_T1}, {F2}")
        p.e(f"s_add_u32 s{self.S_FO3}, s{S_T1}, {F3}")
        p.e(f"s_lshl_b32 s{S_T1}, s{S_UNIT}, 2")
        p.e(f"s_add_u32 s{S_T1}, s{S_T1}, s{S_LW}")
        p.e(f"s_lshl_b32 s{S_T2}, s{S_T1}, 7")
        p.e(f"s_add_u32 s{self.S_FOK}, s{S_T2}, {FK}")
        p.e(f"s_mul_i32 s{S_T1}, s{S_T1}, {16*1152}")
        p.e(f"s_add_u32 s{self.S_KVB}, s{S_T1}, {KVP}")
        p.e(f"v_lshrrev_b32 v{LT0}, 5, v0")
        p.e(f"v_and_b32 v{LT1}, 31, v0")
        p.e(f"v_min_u32 v{LT1}, 16, v{LT1}")
        p.e(f"v_mad_u32_u24 v{VKV}, v{LT0}, 17, v{LT1}")
        p.e(f"v_lshlrev_b32 v{VKV}, 4, v{VKV}")
        self.build_sel(p, self.LSEL, LT0, LT1, LT2)
        self.stamp(p, 116)
        for g in range(2, 4):
            self.xhalf(p, g + 1)
            self.w1stage(p, g)
        self.stamp(p, 117)
        for b in range(13):
            p.wait_vm([("w", b), ("x", 2 * (b >> 1)), ("x", 2 * (b >> 1) + 1)])
            p.e("s_barrier")
            self.stamp(p, b)
            if b >= 1:
                g = b + 3
                if g + 1 < 16:
                    self.xhalf(p, g + 1)
                self.w1stage(p, g)
        p.e(f"s_cmp_eq_u32 s{S_ROLE}, 0")
        p.fence()
        p.e("s_cbranch_scc0 L_load_ffn")

    def loader_role(self, attn, base):
        c = self.c
        p = Prog("load_attn" if attn else "load_ffn")
        p.vm = list(base.vm)
        p.done = set(getattr(base, "done", set()))
        p.nbar = base.nbar
        if not attn:
            p.raw("L_load_ffn:")
        VZ, VN, VF, VFO32, VFO16, VKV, VPF, VPF2 = self.VZ, self.VN, self.VF, self.VFO32, self.VFO16, self.VKV, self.VPF, self.VPF2
        SEL = self.LSEL
        S_WL2K, S_AB, S_FO1, S_FO2, S_FO3, S_FOK, S_KVB, S_WL512 = self.S_WL2K, self.S_AB, self.S_FO1, self.S_FO2, self.S_FO3, self.S_FOK, self.S_KVB, self.S_WL512

        def w2stage(i):
            q = i >> 1
            slot = RING + (i & 3) * 8192
            src = f"s{S_RS32}" if (i & 1) else "0"
            self.dma(p, VW2, SW1, f"s{S_T0}", S_WL1K, slot, ("w2", i), pre=f"s_add_u32 s{S_T0}, s{S_KW+q}, {src}")
            if not attn:
                self.dma(p, VW3, SW1, f"s{S_T0}", S_WL512, slot + 4096, ("w2", i), pre="s_mov_b32 exec_hi, 0")
                p.e("s_mov_b64 exec, -1")

        def a_part(t):
            ln = LINE_ORDER[t]
            self.dma(p, VA, SWS, f"s{S_T0}", S_WL2K, (t & 7) * 16384, ("a", t), "sc1", pre=f"s_add_u32 s{S_T0}, s{S_AB}, {ln*4096}")
            p.e(f"buffer_load_dwordx4 v{VA}, {sr(SWS,4)}, s{S_T0} offen offset:1024 sc1 lds", tag=("a", t))

        def b_part(t):
            ln = LINE_ORDER[t]
            srd, row0 = (SW2, 64 * ln) if ln < 28 else (SWO, 64 * (ln - 28))
            for i in range(2):
                self.dma(p, VB, srd, f"s{S_T0}", S_WL2K, (t & 7) * 16384 + 8192 + i * 1024, ("b", t), pre=f"s_mov_b32 s{S_T0}, {(row0 + 8*i)*1024}")

        for b in range(13, 17):
            if b < 16:
                p.wait_vm([("w", b), ("x", 2 * (b >> 1)), ("x", 2 * (b >> 1) + 1)])
            p.e("s_barrier")
            self.stamp(p, b)
            w2stage(b - 13)
            if b == 13:
                if c.p2_prefetch:
                    p.e("s_mov_b32 exec_hi, 0")
                    p.e(f"buffer_load_dword v{VF}, v{VPF}, {sr(SW1,4)}, 0 offen", tag="pf")
                    p.e("s_mov_b64 exec, -1")
                self.nonce_issue(p, VN, VZ)
            if b == 16 and attn and c.w2_prefetch:
                p.e(f"buffer_load_dword v{VF}, v{VPF2}, {sr(SW2,4)}, 0 offen", tag="pf")
                p.e(f"buffer_load_dword v{VF}, v{VPF2}, {sr(SWO,4)}, 0 offen", tag="pf")
        self.nonce_get(p, VN, VZ)
        nb = na = 0
        f1ok = False
        Bstart = c.Bstart_a if attn else c.Bstart_f
        F1chk = c.F1chk_a if attn else c.F1chk_f
        nA0 = 8 if attn else c.Alead
        for i in range(17):
            if i < 16:
                p.wait_vm([("w2", i)])
            p.e("s_barrier")
            self.stamp(p, 17 + i)
            if 1 <= i <= 12:
                w2stage(i + 3)
            nfree = (i - 2) // 2 + 1 if i >= 2 else 0
            if i == F1chk - 2:
                self.poll_issue(p, VF, VFO32, S_FO1, "f1")
            if i == F1chk:
                self.stamp(p, 118)
                self.poll_check(p, VF, VFO32, S_FO1, "f1")
                self.stamp(p, 119)
                f1ok = True
            budget = 2 if i < 16 else 99
            while budget > 0:
                if f1ok and na < min(nfree, nA0) and na <= nb:
                    a_part(na); na += 1
                elif i >= Bstart and nb < nfree:
                    b_part(nb); nb += 1
                elif f1ok and na < min(nfree, nA0):
                    a_part(na); na += 1
                else:
                    break
                budget -= 1
            if attn and i == 14:
                self.poll_issue(p, VF, VFO16, S_FOK, "fk")
        assert nb == 8 and na == nA0, (nb, na)
        if attn:
            self.stamp(p, 120)
            self.poll_check(p, VF, VFO16, S_FOK, "fk")
            self.stamp(p, 121)
            KVL = 64
            ACC = 32
            for m in range(16):
                if m:
                    p.e(f"s_add_u32 s{S_KVB}, s{S_KVB}, 1152")
                for u in range(2):
                    p.e(f"buffer_load_dwordx4 {vr(KVL+8*m+4*u,4)}, v{VKV}, {sr(SWS,4)}, s{S_KVB} offen offset:{u*34*16} sc1", tag=("kv", m))
                if m >= 6:
                    mm_ = m - 6
                    p.wait_vm([("kv", mm_)])
                    for u in range(2):
                        p.e(mfma(ACC, SEL + 4 * u, KVL + 8 * mm_ + 4 * u, None if (mm_ == 0 and u == 0) else ACC))
            for m in range(10, 16):
                p.wait_vm([("kv", m)])
                for u in range(2):
                    p.e(mfma(ACC, SEL + 4 * u, KVL + 8 * m + 4 * u, ACC))
            p.e(f"s_add_u32 s{S_T0}, s{S_WL2K}, {RING}")
            p.e(f"v_add_u32 v{LT0}, s{S_T0}, v{VA}")
            for x in self.cvt(48, ACC, 8):
                p.e(x)
            p.e(f"ds_write_b128 v{LT0}, {vr(48,4)}")
            p.e(f"ds_write_b128 v{LT0}, {vr(52,4)} offset:1024")
            p.e("s_waitcnt lgkmcnt(0)")
            self.stamp(p, 122)
        nextA = nA0
        for t in range(36):
            p.wait_vm([("a", t), ("b", t)])
            p.e("s_barrier")
            self.stamp(p, 34 + t)
            while nextA < 36 and nextA <= t + c.Alead:
                if nextA == 16:
                    self.stamp(p, 110)
                    self.poll_check(p, VF, VFO16, S_FO2, "f2")
                    self.stamp(p, 111)
                if nextA == 28:
                    self.stamp(p, 112)
                    self.poll_check(p, VF, VFO16, S_FO3, "f3")
                    self.stamp(p, 113)
                a_part(nextA)
                nextA += 1
            if t >= 1 and t + 7 < 36:
                b_part(t + 7)
            if t + c.Alead == 16 - 3:
                self.poll_issue(p, VF, VFO16, S_FO2, "f2")
            if t + c.Alead == 28 - 3:
                self.poll_issue(p, VF, VFO16, S_FO3, "f3")
        self.stamps_out(p)
        p.e("s_endpgm")
        return p

    def build(self):
        head = Prog("head")
        self.prologue(head)
        self.loader_common(head)
        la = self.loader_role(True, head)
        lf = self.loader_role(False, head)
        disp = Prog("disp")
        disp.raw("L_exit:")
        disp.e("s_endpgm")
        disp.raw("L_compute:")
        disp.e(f"s_cmp_eq_u32 s{S_ROLE}, 0")
        disp.e("s_cbranch_scc1 L_comp_attn")
        cf = self.compute(False)
        ca = self.compute(True)
        nb = {q.name: q.nbar for q in (la, lf, cf, ca)}
        assert len(set(nb.values())) == 1, nb
        hdr = open("gated_mix__linear_kernel_hedgehog__dense_activation_relu__prompt.s.ref").read().split("; Override")[0]
        out = [hdr.rstrip("\n"),
               "; @launch grid=(256,1,1) block=(512,1,1) lds=163840",
               '.amdgcn_target "amdgcn-amd-amdhsa--gfx950"', ".text", f".globl {KNAME}", ".p2align 8",
               f".type {KNAME},@function", f"{KNAME}:"]
        out += [head.text(), la.text(), ".p2align 6", lf.text(), ".p2align 6", disp.text(), cf.text(), ".p2align 6", ca.text(), ".p2align 6"]
        out.append("L_code_end:")
        out.append('.section .rodata,"a"\n.p2align 6')
        out.append(f".amdhsa_kernel {KNAME}")
        out.append("  .amdhsa_next_free_vgpr 256\n  .amdhsa_next_free_sgpr 102\n  .amdhsa_accum_offset 256\n  .amdhsa_group_segment_fixed_size 0\n  .amdhsa_kernarg_size 88\n  .amdhsa_user_sgpr_count 2\n  .amdhsa_user_sgpr_kernarg_segment_ptr 1\n  .amdhsa_system_sgpr_workgroup_id_x 1")
        out.append(".end_amdhsa_kernel")
        info = {q.name: (len(q.lines), q.nops) for q in (head, la, lf, cf, ca)}
        return "\n".join(out) + "\n", info


def generate(path, **kw):
    cfg = Cfg()
    for k, v in kw.items():
        assert hasattr(cfg, k), k
        setattr(cfg, k, v)
    txt, info = G(cfg).build()
    open(path, "w").write(txt)
    return info


if __name__ == "__main__":
    path = sys.argv[1] if len(sys.argv) > 1 else "gated_mix__linear_kernel_hedgehog__dense_activation_relu__prompt.s"
    kw = {}
    for a in sys.argv[2:]:
        k, v = a.split("=")
        kw[k] = int(v)
    print(generate(path, **kw))
```

```python
import sys
from asmlib import Prog, vr, sr, interleave

KNAME = "gated_mix__linear_kernel_hedgehog__dense_activation_relu__prompt_kernel"


class Cfg:
    rotR = 2
    rotX = 0
    Y1f = 9
    Y1a = 6
    Y2 = 5
    Alead = 4
    stamps = 0
    code_prefetch = 1
    p2_prefetch = 1
    w2_prefetch = 1
    Bstart_f = 5
    Bstart_a = 2
    F1chk_f = 12
    F1chk_a = 5
    dbgtime = 0
    pk = 1


ACT = 0
KVP = 0x900000
GP = 0x9A0000
FL = 0x9C0000
F1, F2, F3, FK = FL, FL + 0x1000, FL + 0x2000, FL + 0x3000
STAMPS = 0xA00000
WS_SIZE = 0xB00000
RING = 131072

S_WAVE, S_M, S_ROLE, S_UNIT, S_ROT, S_MM, S_NN, S_LW = 3, 4, 5, 6, 7, 8, 9, 10
S_T0, S_T1, S_T2, S_T3 = 11, 12, 13, 14
S_NONCE = 15
P_X, P_WQKV, P_WPHI, P_WO, P_BX, P_W1, P_W2, P_GATE, P_OUT, P_DBG, P_WS = 16, 18, 20, 22, 24, 26, 28, 30, 32, 34, 36
S_L2E = 38
SX, SW1, SW2, SWO, SWS, SOUT, SPHI = 40, 44, 48, 52, 56, 60, 64
S_KX = 68
S_KW = 76
S_C = 68
S_C1, S_C2, S_C3, S_RS, S_WL1K, S_W1L, S_RS16, S_RS32, S_RS48 = 84, 85, 86, 87, 88, 89, 90, 91, 92
S_CNT = 100
S_T4 = 101

LINE_ORDER = [7 * i + r for i in range(4) for r in (0, 1, 4, 5)] + [7 * i + r for i in range(4) for r in (2, 3, 6)] + [28 + i for i in range(8)]
assert len(LINE_ORDER) == 36

MF = "v_mfma_f32_32x32x16_bf16"
VX, VW1, VW2, VW3, VA, VB = 2, 3, 4, 5, 6, 7
LT0, LT1, LT2, LT3 = 8, 9, 10, 11
VST0, VST1 = 30, 31


def mfma(d, a, b, c):
    cs = "0" if c is None else vr(c, 16)
    return f"{MF} {vr(d,16)}, {vr(a,4)}, {vr(b,4)}, {cs}"


class G:
    def __init__(self, cfg):
        self.c = cfg
        self.uid = 0

    def lab(self, s):
        self.uid += 1
        return f"L_{s}_{self.uid}"

    def stamp(self, p, idx):
        if not self.c.stamps:
            return
        p.e(f"{'s_memtime' if self.c.stamps == 2 else 's_memrealtime'} s[98:99]")
        p.e("s_waitcnt lgkmcnt(0)")
        p.e(f"v_writelane_b32 v{VST0 + idx // 64}, s98, {idx % 64}")

    def stamps_out(self, p):
        if not self.c.stamps:
            return
        p.e(f"s_lshl_b32 s{S_T0}, s2, 3")
        p.e(f"s_add_u32 s{S_T0}, s{S_T0}, s{S_WAVE}")
        p.e(f"s_lshl_b32 s{S_T0}, s{S_T0}, 9")
        p.e(f"s_add_u32 s{S_T0}, s{S_T0}, {STAMPS}")
        p.e(f"v_lshlrev_b32 v1, 2, v0")
        p.e(f"buffer_store_dword v{VST0}, v1, {sr(SWS,4)}, s{S_T0} offen")
        p.e(f"buffer_store_dword v{VST1}, v1, {sr(SWS,4)}, s{S_T0} offen offset:256")

    def prologue(self, p):
        c = self.c
        if c.stamps:
            p.e(f"{'s_memtime' if c.stamps == 2 else 's_memrealtime'} s[96:97]")
        if c.dbgtime:
            p.e("s_memrealtime s[96:97]")
        p.e(f"s_load_dwordx16 s[16:31], s[0:1], 0")
        p.e(f"s_load_dwordx4 s[32:35], s[0:1], 64")
        p.e(f"s_load_dwordx2 s[36:37], s[0:1], 80")
        p.e("s_cmp_ge_u32 s2, 256")
        p.e("s_cbranch_scc1 L_exit")
        if c.code_prefetch:
            p.e(f"s_getpc_b64 s[12:13]")
            p.raw("L_pc0:")
            p.e(f"s_lshr_b32 s{S_T0}, s2, 3")
            p.e(f"s_lshl_b32 s{S_T0}, s{S_T0}, 11")
            p.e(f"s_min_u32 s{S_T0}, s{S_T0}, L_code_end-L_pc0-2048")
            p.e(f"v_lshl_add_u32 v2, v0, 2, s{S_T0}")
            p.e(f"global_load_dword v255, v2, s[12:13]", tag="cpf")
        p.e("v_lshrrev_b32 v1, 6, v0")
        p.e("v_and_b32 v0, 63, v0")
        p.e(f"v_readfirstlane_b32 s{S_WAVE}, v1")
        p.e(f"s_lshr_b32 s{S_T1}, s2, 3")
        p.e(f"s_and_b32 s{S_T0}, s2, 7")
        p.e(f"s_and_b32 s{S_M}, s{S_T0}, 1")
        p.e(f"s_lshl_b32 s{S_M}, s{S_M}, 3")
        p.e(f"s_and_b32 s{S_NN}, s{S_T1}, 7")
        p.e(f"s_add_u32 s{S_M}, s{S_M}, s{S_NN}")
        p.e(f"s_lshr_b32 s{S_T2}, s{S_T1}, 3")
        p.e(f"s_lshr_b32 s{S_ROLE}, s{S_T2}, 1")
        p.e(f"s_and_b32 s{S_UNIT}, s{S_T0}, 6")
        p.e(f"s_and_b32 s{S_T3}, s{S_T2}, 1")
        p.e(f"s_add_u32 s{S_UNIT}, s{S_UNIT}, s{S_T3}")
        p.e(f"s_lshl_b32 s{S_MM}, s{S_T0}, 2")
        p.e(f"s_add_u32 s{S_MM}, s{S_MM}, s{S_T2}")
        p.e(f"s_add_u32 s{S_ROT}, s{S_M}, s{S_T2}")
        p.e(f"s_and_b32 s{S_ROT}, s{S_ROT}, {c.rotR-1}")
        p.e(f"s_mul_i32 s{S_ROT}, s{S_ROT}, {8//c.rotR}")
        if c.rotX:
            p.e(f"s_lshr_b32 s{S_T3}, s{S_T0}, 1")
            p.e(f"s_lshl_b32 s{S_T2}, s{S_T0}, 1")
            p.e(f"s_add_u32 s{S_T3}, s{S_T3}, s{S_T2}")
            p.e(f"s_and_b32 s{S_T3}, s{S_T3}, {8//c.rotR-1}")
            p.e(f"s_add_u32 s{S_ROT}, s{S_ROT}, s{S_T3}")
        p.e(f"s_and_b32 s{S_LW}, s{S_WAVE}, 3")
        for s in (SX, SW1, SW2, SWO, SWS, SOUT, SPHI):
            p.e(f"s_mov_b32 s{s+3}, 0x20000")
        p.e(f"s_mov_b32 s{SX+2}, {2048*1024}")
        p.e(f"s_mov_b32 s{SW2+2}, {1792*1024}")
        p.e(f"s_mov_b32 s{SWO+2}, {512*1024}")
        p.e(f"s_mov_b32 s{SWS+2}, {WS_SIZE}")
        p.e(f"s_mov_b32 s{SOUT+2}, {2048*1024}")
        p.e(f"s_mov_b32 s{SPHI+2}, {32*512}")
        p.e(f"s_mul_i32 s{S_T0}, s{S_UNIT}, 224")
        p.e(f"s_bitcmp1_b32 s{S_UNIT}, 0")
        p.e(f"s_cselect_b32 s{S_C1}, 32, 0")
        p.e(f"s_cselect_b32 s{S_C3}, 0, 192")
        p.e(f"s_add_u32 s{S_C1}, s{S_C1}, s{S_T0}")
        p.e(f"s_add_u32 s{S_C2}, s{S_C1}, 128")
        p.e(f"s_add_u32 s{S_C3}, s{S_C3}, s{S_T0}")
        p.e(f"s_lshl_b32 s{S_WL1K}, s{S_LW}, 10")
        p.e(f"v_lshrrev_b32 v{LT0}, 3, v0")
        p.e(f"v_and_b32 v{LT1}, 7, v0")
        p.e(f"v_lshrrev_b32 v{LT2}, 4, v0")
        p.e(f"s_and_b32 s{S_T3}, s{S_LW}, 1")
        p.e(f"s_lshl_b32 s{S_T1}, s{S_T3}, 2")
        p.e(f"v_or_b32 v{LT2}, s{S_T1}, v{LT2}")
        p.e(f"v_xor_b32 v{LT2}, v{LT2}, v{LT1}")
        p.e(f"v_lshlrev_b32 v{LT2}, 4, v{LT2}")
        p.e(f"v_lshl_or_b32 v{VX}, v{LT0}, 10, v{LT2}")
        p.e(f"s_lshl_b32 s{S_T1}, s{S_M}, 17")
        p.e(f"s_lshl_b32 s{S_T2}, s{S_LW}, 13")
        p.e(f"s_add_u32 s{S_T1}, s{S_T1}, s{S_T2}")
        p.e(f"v_add_u32 v{VX}, s{S_T1}, v{VX}")
        p.e(f"s_lshl_b32 s{S_T0}, s{S_UNIT}, 7")
        p.e(f"s_lshl_b32 s{S_T1}, s{S_T3}, 10")
        p.e(f"s_add_u32 s{S_T0}, s{S_T0}, s{S_T1}")
        p.e(f"s_add_u32 s{S_T0}, s{S_T0}, 1024")
        p.e(f"s_lshl_b32 s{S_T1}, s{S_C1}, 1")
        p.e(f"s_lshl_b32 s{S_T2}, s{S_T3}, 7")
        p.e(f"s_add_u32 s{S_T1}, s{S_T1}, s{S_T2}")
        p.e(f"s_mov_b32 s{S_RS}, 3072")
        p.e(f"s_cmp_eq_u32 s{S_ROLE}, 0")
        p.e(f"s_cselect_b32 s{S_T0}, s{S_T0}, s{S_T1}")
        p.e(f"s_cselect_b32 s{S_RS}, s{S_RS}, 3584")
        p.e(f"s_lshl_b32 s{SW1+2}, s{S_RS}, 9")
        p.e(f"v_bfe_u32 v{LT2}, v0, 4, 1")
        p.e(f"v_lshlrev_b32 v{LT2}, 2, v{LT2}")
        p.e(f"v_xor_b32 v{LT2}, v{LT2}, v{LT1}")
        p.e(f"v_lshlrev_b32 v{LT2}, 4, v{LT2}")
        p.e(f"v_mul_u32_u24 v{LT3}, s{S_RS}, v{LT0}")
        p.e(f"s_lshr_b32 s{S_T1}, s{S_LW}, 1")
        p.e(f"s_lshl_b32 s{S_W1L}, s{S_T3}, 12")
        p.e(f"s_lshl_b32 s{S_T2}, s{S_T1}, 10")
        p.e(f"s_add_u32 s{S_W1L}, s{S_W1L}, s{S_T2}")
        p.e(f"s_lshl_b32 s{S_T2}, s{S_T3}, 5")
        p.e(f"v_xor_b32 v{VW1}, s{S_T2}, v{LT2}")
        p.e(f"s_mul_i32 s{S_T1}, s{S_T1}, s{S_RS}")
        p.e(f"s_lshl_b32 s{S_T1}, s{S_T1}, 3")
        p.e(f"s_add_u32 s{S_T1}, s{S_T1}, s{S_T0}")
        p.e(f"v_add3_u32 v{VW1}, v{VW1}, v{LT3}, s{S_T1}")
        p.e(f"s_lshl_b32 s{S_RS16}, s{S_RS}, 4")
        p.e(f"s_lshl_b32 s{S_RS32}, s{S_RS}, 5")
        p.e(f"s_add_u32 s{S_RS48}, s{S_RS16}, s{S_RS32}")
        p.e(f"s_lshl_b32 s{S_T2}, s{S_RS}, 6")
        for q in range(8):
            p.e(f"s_add_u32 s{S_T1}, s{S_ROT}, {q}")
            p.e(f"s_and_b32 s{S_T1}, s{S_T1}, 7")
            p.e(f"s_lshl_b32 s{S_KX+q}, s{S_T1}, 7")
            p.e(f"s_mul_i32 s{S_KW+q}, s{S_T1}, s{S_T2}")
        p.e(f"s_cmp_eq_u32 s{S_ROLE}, 0")
        p.e("s_waitcnt lgkmcnt(0)")
        p.e(f"s_mov_b64 s[{SX}:{SX+1}], s[{P_X}:{P_X+1}]")
        p.e(f"s_cselect_b32 s{SW1}, s{P_WQKV}, s{P_W1}")
        p.e(f"s_cselect_b32 s{SW1+1}, s{P_WQKV+1}, s{P_W1+1}")
        for s, q in ((SW2, P_W2), (SWO, P_WO), (SWS, P_WS), (SOUT, P_OUT), (SPHI, P_WPHI)):
            p.e(f"s_mov_b64 s[{s}:{s+1}], s[{q}:{q+1}]")
        if c.stamps:
            p.e(f"v_writelane_b32 v{VST1}, s96, 63")
        p.e(f"s_cmp_lt_u32 s{S_WAVE}, 4")
        p.fence()
        p.e("s_cbranch_scc1 L_compute")

    def build_sel(self, p, vsel, t0, t1, t2):
        p.e(f"v_and_b32 v{t0}, 1, v0")
        p.e(f"v_lshlrev_b32 v{t0}, 4, v{t0}")
        p.e(f"v_mov_b32 v{t1}, 0x3f80")
        p.e(f"v_lshlrev_b32 v{t0}, v{t0}, v{t1}")
        p.e(f"v_bfe_u32 v{t1}, v0, 2, 1")
        p.e(f"v_lshrrev_b32 v{t2}, 5, v0")
        p.e(f"v_cmp_eq_u32 vcc, v{t1}, v{t2}")
        p.e(f"v_bfe_u32 v{t1}, v0, 3, 2")
        p.e(f"v_bfe_u32 v{t2}, v0, 1, 1")
        p.e(f"v_cndmask_b32 v{t0}, 0, v{t0}, vcc")
        p.e(f"v_lshl_or_b32 v{t1}, v{t1}, 1, v{t2}")
        for q in range(8):
            p.e(f"v_cmp_eq_u32 vcc, {q}, v{t1}")
            p.e(f"v_cndmask_b32 v{vsel+q}, 0, v{t0}, vcc")

    def nonce_issue(self, p, vn, vzero):
        p.e(f"global_load_dword v{vn}, v{vzero}, {sr(P_DBG,2)} sc1", tag="nonce")

    def nonce_get(self, p, vn, vzero):
        p.wait_vm("nonce")
        p.e(f"v_readfirstlane_b32 s{S_NONCE}, v{vn}")
        ok, lp = self.lab("nok"), self.lab("nlp")
        p.e(f"s_cmp_lg_u32 s{S_NONCE}, 0")
        p.fence()
        p.e(f"s_cbranch_scc1 {ok}")
        p.e(f"s_mov_b32 s{S_CNT}, 0")
        p.label(lp)
        p.e("s_sleep 4")
        p.raw(f"    global_load_dword v{vn}, v{vzero}, {sr(P_DBG,2)} sc1")
        p.raw("    s_waitcnt vmcnt(0)")
        p.e(f"v_readfirstlane_b32 s{S_NONCE}, v{vn}")
        p.e(f"s_add_u32 s{S_CNT}, s{S_CNT}, 1")
        p.e(f"s_cmp_ge_u32 s{S_CNT}, 20000")
        p.e(f"s_cbranch_scc1 {ok}")
        p.e(f"s_cmp_eq_u32 s{S_NONCE}, 0")
        p.e(f"s_cbranch_scc1 {lp}")
        p.label(ok)

    def poll_issue(self, p, vf, voff, soff, tag):
        p.e(f"buffer_load_dword v{vf}, v{voff}, {sr(SWS,4)}, s{soff} offen sc1", tag=tag)

    def poll_check(self, p, vf, voff, soff, tag):
        p.wait_vm(tag)
        ok, lp = self.lab("pok"), self.lab("plp")
        p.e(f"v_cmp_ne_u32 vcc, s{S_NONCE}, v{vf}")
        p.e("s_cmp_eq_u64 vcc, 0")
        p.fence()
        p.e(f"s_cbranch_scc1 {ok}")
        p.e(f"s_mov_b32 s{S_CNT}, 0")
        p.label(lp)
        p.e("s_sleep 2")
        p.raw(f"    buffer_load_dword v{vf}, v{voff}, {sr(SWS,4)}, s{soff} offen sc1")
        p.raw("    s_waitcnt vmcnt(0)")
        p.e(f"s_add_u32 s{S_CNT}, s{S_CNT}, 1")
        p.e(f"s_cmp_ge_u32 s{S_CNT}, 20000")
        p.e(f"s_cbranch_scc1 {ok}")
        p.e(f"v_cmp_ne_u32 vcc, s{S_NONCE}, v{vf}")
        p.e("s_cmp_lg_u64 vcc, 0")
        p.e(f"s_cbranch_scc1 {lp}")
        p.label(ok)

    def flag_store(self, p, vtmp, soff):
        p.wait_vm0()
        p.e(f"v_mov_b32 v{vtmp}, s{S_NONCE}")
        p.e("s_mov_b64 exec, 1")
        p.e(f"buffer_store_dword v{vtmp}, off, {sr(SWS,4)}, s{soff} sc1", tag="flag")
        p.e("s_mov_b64 exec, -1")

    def softmax(self, P, out, t):
        a = []
        a.append(f"v_max3_f32 v{t}, v{P}, v{P+1}, v{P+2}")
        a.append(f"v_max3_f32 v{t+1}, v{P+3}, v{P+4}, v{P+5}")
        a.append(f"v_max3_f32 v{t+2}, v{P+6}, v{P+7}, v{P+8}")
        a.append(f"v_max3_f32 v{t+3}, v{P+9}, v{P+10}, v{P+11}")
        a.append(f"v_max3_f32 v{t}, v{t}, v{P+12}, v{P+13}")
        a.append(f"v_max3_f32 v{t+1}, v{t+1}, v{P+14}, v{P+15}")
        a.append(f"v_max3_f32 v{t}, v{t}, v{t+2}, v{t+3}")
        a.append(f"v_max_f32 v{t}, v{t}, v{t+1}")
        a.append(f"v_mul_f32 v{t}, 0xbfb8aa3b, v{t}")
        for i in range(0, 16, 2):
            a.append(f"v_pk_fma_f32 {vr(P+i,2)}, {vr(P+i,2)}, {sr(S_L2E,2)}, {vr(t,2)} op_sel_hi:[1,1,0]")
        b = []
        for i in range(16):
            b.append(f"v_exp_f32 v{P+i}, v{P+i}")
        b.append(f"v_pk_add_f32 {vr(t,2)}, {vr(P,2)}, {vr(P+2,2)}")
        b.append(f"v_pk_add_f32 {vr(t+2,2)}, {vr(P+4,2)}, {vr(P+6,2)}")
        b.append(f"v_pk_add_f32 {vr(t,2)}, {vr(t,2)}, {vr(P+8,2)}")
        b.append(f"v_pk_add_f32 {vr(t+2,2)}, {vr(t+2,2)}, {vr(P+10,2)}")
        b.append(f"v_pk_add_f32 {vr(t,2)}, {vr(t,2)}, {vr(P+12,2)}")
        b.append(f"v_pk_add_f32 {vr(t+2,2)}, {vr(t+2,2)}, {vr(P+14,2)}")
        b.append(f"v_pk_add_f32 {vr(t,2)}, {vr(t,2)}, {vr(t+2,2)}")
        b.append(f"v_add_f32 v{t}, v{t}, v{t+1}")
        b.append(f"v_rcp_f32 v{t}, v{t}")
        for i in range(0, 16, 2):
            b.append(f"v_pk_mul_f32 {vr(P+i,2)}, {vr(P+i,2)}, {vr(t,2)} op_sel_hi:[1,0]")
        for i in range(8):
            b.append(f"v_cvt_pk_bf16_f32 v{out+i}, v{P+2*i}, v{P+2*i+1}")
        return a, b

    @staticmethod
    def cvt(dst, src, n):
        return [f"v_cvt_pk_bf16_f32 v{dst+i}, v{src+2*i}, v{src+2*i+1}" for i in range(n)]

    def compute(self, attn):
        c = self.c
        p = Prog("comp_attn" if attn else "comp_ffn")
        p.raw("L_comp_attn:" if attn else "L_comp_ffn:")
        VXA = 2
        VWA = 6
        VWB0, VWB1, VWH = 7, 8, 9
        VAA, VAA2, VBA, VBA2 = 10, 11, 12, 13
        VL16 = 14
        VT0, VT1, VT2, VT3 = 16, 17, 18, 19
        VZ, VN = 20, 21
        VPH, VSG = 22, 23
        VT4, VT5, VT6, VT7 = 24, 25, 26, 27
        VOUT = 28
        VG = 29
        ACC = 32
        FS = (96, 136)
        WPHI, SEL, CONES, GW = 176, 192, 200, 216
        WH = 120
        NC = 2 if attn else 3
        SF_A, SF_B, SST1, SST2, SST3, SGP = S_C, S_C + 1, S_C + 2, S_C + 3, S_C + 4, S_C + 5

        p.e(f"v_mov_b32 v{VZ}, 0")
        if attn:
            skip = self.lab("nw")
            p.e(f"s_lshl_b32 s{S_T0}, s2, 3")
            p.e(f"s_add_u32 s{S_T0}, s{S_T0}, s{S_WAVE}")
            p.e(f"s_cmp_lg_u32 s{S_T0}, 8")
            p.e(f"s_cbranch_scc1 {skip}")
            p.e(f"s_memrealtime s[94:95]")
            p.e("s_waitcnt lgkmcnt(0)")
            p.e(f"s_or_b32 s{S_T0}, s94, 1")
            p.e(f"v_mov_b32 v{VN}, s{S_T0}")
            p.e("s_mov_b64 exec, 1")
            p.raw(f"    global_store_dword v{VZ}, v{VN}, {sr(P_DBG,2)} sc1")
            p.e("s_mov_b64 exec, -1")
            p.label(skip)
        p.e(f"v_lshlrev_b32 v{VL16}, 4, v0")
        p.e(f"s_mov_b32 s{S_L2E}, 0x3fb8aa3b")
        p.e(f"s_mov_b32 s{S_L2E+1}, 0x3fb8aa3b")
        if attn:
            p.e(f"v_lshrrev_b32 v{VT0}, 5, v0")
            p.e(f"v_lshlrev_b32 v{VT0}, 4, v{VT0}")
            p.e(f"s_lshl_b32 s{S_T0}, s{S_UNIT}, 7")
            p.e(f"v_add_u32 v{VT0}, s{S_T0}, v{VT0}")
            for kk in range(4):
                p.e(f"global_load_dwordx4 {vr(GW+4*kk,4)}, v{VT0}, {sr(P_GATE,2)} offset:{32*kk}", tag="gw")
        p.e(f"v_and_b32 v{VT0}, 31, v0")
        p.e(f"v_lshrrev_b32 v{VT1}, 5, v0")
        p.e(f"v_bfe_u32 v{VT2}, v0, 1, 3")
        p.e(f"v_xor_b32 v{VT2}, v{VT2}, v{VT1}")
        p.e(f"v_lshlrev_b32 v{VT2}, 4, v{VT2}")
        p.e(f"v_lshl_or_b32 v{VXA}, v{VT0}, 7, v{VT2}")
        for kk in range(1, 4):
            p.e(f"v_xor_b32 v{VXA+kk}, {32*kk}, v{VXA}")
        p.e(f"v_bfe_u32 v{VT0}, v0, 2, 2")
        p.e(f"v_lshl_or_b32 v{VT0}, v{VT1}, 3, v{VT0}")
        p.e(f"v_and_b32 v{VT4}, 1, v0")
        p.e(f"v_bfe_u32 v{VT5}, v0, 1, 1")
        p.e(f"v_lshlrev_b32 v{VT1}, 4, v{VT4}")
        p.e(f"v_lshl_or_b32 v{VT1}, v{VT5}, 3, v{VT1}")
        p.e(f"v_bfe_u32 v{VT2}, v0, 4, 1")
        p.e(f"v_bfe_u32 v{VT3}, v0, 3, 1")
        p.e(f"v_lshlrev_b32 v{VT3}, 6, v{VT3}")
        if attn:
            p.e(f"s_lshl_b32 s{S_T0}, s{S_LW}, 5")
            p.e(f"v_add_u32 v{VT6}, s{S_T0}, v{VT1}")
            p.e(f"v_lshl_or_b32 v{VT7}, v{VT2}, 5, v{VT3}")
            p.e(f"v_xor_b32 v{VT6}, v{VT6}, v{VT7}")
            p.e(f"v_lshl_or_b32 v{VT6}, v{VT2}, 12, v{VT6}")
            p.e(f"v_lshl_add_u32 v{VT6}, v{VT0}, 7, v{VT6}")
            p.e(f"v_add_u32 v{VWA}, {RING}, v{VT6}")
        else:
            p.e(f"s_and_b32 s{S_T0}, s{S_LW}, 1")
            p.e(f"s_lshl_b32 s{S_T0}, s{S_T0}, 6")
            p.e(f"s_lshr_b32 s{S_T1}, s{S_LW}, 1")
            p.e(f"s_lshl_b32 s{S_T2}, s{S_T1}, 5")
            p.e(f"s_xor_b32 s{S_T0}, s{S_T0}, s{S_T2}")
            p.e(f"s_lshl_b32 s{S_T1}, s{S_T1}, 12")
            p.e(f"s_add_u32 s{S_T1}, s{S_T1}, {RING}")
            p.e(f"v_lshl_or_b32 v{VT6}, v{VT2}, 5, v{VT1}")
            p.e(f"v_xor_b32 v{VT6}, v{VT6}, v{VT3}")
            p.e(f"v_xor_b32 v{VT6}, s{S_T0}, v{VT6}")
            p.e(f"v_lshl_add_u32 v{VT6}, v{VT0}, 7, v{VT6}")
            p.e(f"v_add_u32 v{VWA}, s{S_T1}, v{VT6}")
        p.e(f"v_lshl_or_b32 v{VT6}, v{VT2}, 5, v{VT1}")
        p.e(f"v_xor_b32 v{VT7}, v{VT6}, v{VT3}")
        p.e(f"v_lshl_add_u32 v{VT7}, v{VT0}, 7, v{VT7}")
        p.e(f"v_add_u32 v{VWB0}, {RING}, v{VT7}")
        p.e(f"v_xor_b32 v{VWB1}, 64, v{VWB0}")
        p.e(f"v_lshl_add_u32 v{VT7}, v{VT0}, 6, v{VT6}")
        p.e(f"v_add_u32 v{VWH}, {RING+4096}, v{VT7}")
        p.e(f"s_lshr_b32 s{S_T0}, s{S_LW}, 1")
        p.e(f"s_lshl_b32 s{S_T0}, s{S_T0}, 12")
        p.e(f"v_add_u32 v{VAA}, s{S_T0}, v{VL16}")
        p.e(f"v_add_u32 v{VAA2}, 0x10000, v{VAA}")
        p.e(f"v_lshlrev_b32 v{VT6}, 5, v{VT4}")
        p.e(f"v_lshl_or_b32 v{VT6}, v{VT2}, 4, v{VT6}")
        p.e(f"v_lshl_or_b32 v{VT6}, v{VT5}, 3, v{VT6}")
        p.e(f"v_xor_b32 v{VT6}, v{VT6}, v{VT3}")
        p.e(f"s_and_b32 s{S_T0}, s{S_LW}, 1")
        p.e(f"s_lshl_b32 s{S_T0}, s{S_T0}, 6")
        p.e(f"v_xor_b32 v{VT6}, s{S_T0}, v{VT6}")
        p.e(f"v_lshl_add_u32 v{VT6}, v{VT0}, 7, v{VT6}")
        p.e(f"v_add_u32 v{VBA}, 8192, v{VT6}")
        p.e(f"v_add_u32 v{VBA2}, 0x10000, v{VBA}")
        p.e(f"v_and_b32 v{VT6}, 31, v0")
        p.e(f"v_lshrrev_b32 v{VT7}, 5, v0")
        p.e(f"v_lshlrev_b32 v{VT7}, 5, v{VT7}")
        p.e(f"v_lshl_or_b32 v{VOUT}, v{VT6}, 10, v{VT7}")
        p.e(f"s_lshl_b32 s{S_T1}, s{S_MM}, 1")
        p.e(f"s_lshr_b32 s{S_T2}, s{S_LW}, 1")
        p.e(f"s_add_u32 s{S_T1}, s{S_T1}, s{S_T2}")
        p.e(f"s_lshl_b32 s{S_T2}, s{S_T1}, 15")
        p.e(f"s_lshl_b32 s{S_T3}, s{S_NN}, 7")
        p.e(f"s_add_u32 s{S_T2}, s{S_T2}, s{S_T3}")
        p.e(f"s_add_u32 s{S_T2}, s{S_T2}, s{S_T0}")
        p.e(f"v_add_u32 v{VOUT}, s{S_T2}, v{VOUT}")
        p.e(f"s_lshr_b32 s{S_T2}, s{S_T1}, 2")
        p.e(f"s_lshl_b32 s{S_T2}, s{S_T2}, 12")
        p.e(f"s_and_b32 s{S_T3}, s{S_T1}, 3")
        p.e(f"s_lshl_b32 s{S_T3}, s{S_T3}, 7")
        p.e(f"s_add_u32 s{S_T2}, s{S_T2}, s{S_T3}")
        p.e(f"s_add_u32 s{S_T2}, s{S_T2}, {GP}")
        p.e(f"v_lshl_add_u32 v{VG}, v{VT6}, 2, s{S_T2}")
        p.e(f"s_lshl_b32 s{S_T1}, s{S_M}, 1")
        p.e(f"s_lshr_b32 s{S_T2}, s{S_LW}, 1")
        p.e(f"s_add_u32 s{S_T1}, s{S_T1}, s{S_T2}")
        p.e(f"s_lshl_b32 s{S_T1}, s{S_T1}, 7")
        p.e(f"s_lshl_b32 s{S_T2}, s{S_UNIT}, 3")
        p.e(f"s_and_b32 s{S_T3}, s{S_LW}, 1")
        p.e(f"s_lshl_b32 s{S_T3}, s{S_T3}, 2")
        p.e(f"s_add_u32 s{S_T1}, s{S_T1}, s{S_T2}")
        p.e(f"s_add_u32 s{S_T1}, s{S_T1}, s{S_T3}")
        p.e(f"s_add_u32 s{SF_B}, s{S_T1}, {F3 if attn else F2}")
        p.e(f"s_mul_i32 s{S_T4}, s{S_M}, {4*144*1024}")
        if attn:
            p.e(f"s_lshl_b32 s{S_T1}, s{S_UNIT}, 2")
            p.e(f"s_add_u32 s{S_T1}, s{S_T1}, s{S_LW}")
            p.e(f"s_lshl_b32 s{S_T2}, s{S_T1}, 7")
            p.e(f"s_lshl_b32 s{S_T3}, s{S_M}, 2")
            p.e(f"s_add_u32 s{S_T2}, s{S_T2}, s{S_T3}")
            p.e(f"s_add_u32 s{SF_A}, s{S_T2}, {FK}")
            p.e(f"s_lshl_b32 s{S_T1}, s{S_T1}, 4")
            p.e(f"s_add_u32 s{S_T1}, s{S_T1}, s{S_M}")
            p.e(f"s_mul_i32 s{S_T1}, s{S_T1}, 1152")
            p.e(f"s_add_u32 s{SST1}, s{S_T1}, {KVP}")
            p.e(f"s_mul_i32 s{S_T1}, s{S_LW}, {144*1024}")
            p.e(f"s_lshl_b32 s{S_T2}, s{S_UNIT}, 12")
            p.e(f"s_add_u32 s{S_T1}, s{S_T1}, s{S_T2}")
            p.e(f"s_add_u32 s{S_T1}, s{S_T1}, s{S_T4}")
            p.e(f"s_add_u32 s{SST2}, s{S_T1}, {112*1024}")
            p.e(f"s_lshl_b32 s{S_T1}, s{S_M}, 3")
            p.e(f"s_add_u32 s{S_T1}, s{S_T1}, s{S_UNIT}")
            p.e(f"s_lshl_b32 s{S_T1}, s{S_T1}, 9")
            p.e(f"s_lshl_b32 s{S_T2}, s{S_LW}, 7")
            p.e(f"s_add_u32 s{S_T1}, s{S_T1}, s{S_T2}")
            p.e(f"s_add_u32 s{SGP}, s{S_T1}, {GP}")
            p.e(f"s_sub_u32 s{S_T1}, s{S_UNIT}, s{S_ROT}")
            p.e(f"s_and_b32 s{S_T1}, s{S_T1}, 7")
            p.e(f"s_lshl_b32 s{SST3}, s{S_T1}, 14")
            p.e(f"v_lshlrev_b32 v{VT6}, 4, v{VT2}")
            p.e(f"v_lshl_or_b32 v{VT6}, v{VT5}, 3, v{VT6}")
            p.e(f"v_lshl_add_u32 v{VT6}, v{VT0}, 5, v{VT6}")
            p.e(f"v_add_u32 v{VPH}, {7*16384}, v{VT6}")
            p.e(f"s_lshl_b32 s{S_T1}, s{S_LW}, 9")
            p.e(f"v_add_u32 v15, s{S_T1}, v{VPH}")
            p.e(f"v_bfe_u32 v{VT6}, v0, 2, 1")
            p.e(f"v_cmp_eq_u32 vcc, 1, v{VT6}")
            p.e(f"v_mov_b32 v{VT7}, 0x80008000")
            p.e(f"v_bfe_u32 v{VT6}, v0, 4, 1")
            p.e(f"v_cndmask_b32 v{VSG}, 0, v{VT7}, vcc")
            p.e(f"v_cvt_f32_u32 v{CONES}, v{VT6}")
            self.build_sel(p, SEL, VT4, VT5, VT6)
            for i in range(1, 16):
                p.e(f"v_mov_b32 v{CONES+i}, v{CONES}")
        else:
            p.e(f"s_lshl_b32 s{S_T1}, s{S_M}, 7")
            p.e(f"s_lshl_b32 s{S_T2}, s{S_UNIT}, 4")
            p.e(f"s_lshl_b32 s{S_T3}, s{S_LW}, 2")
            p.e(f"s_add_u32 s{S_T1}, s{S_T1}, s{S_T2}")
            p.e(f"s_add_u32 s{S_T1}, s{S_T1}, s{S_T3}")
            p.e(f"s_add_u32 s{SF_A}, s{S_T1}, {F1}")
            p.e(f"s_lshl_b32 s{S_T1}, s{S_LW}, 5")
            p.e(f"s_add_u32 s{S_T1}, s{S_T1}, s{S_C1}")
            p.e(f"s_lshl_b32 s{S_T1}, s{S_T1}, 6")
            p.e(f"s_add_u32 s{SST1}, s{S_T1}, s{S_T4}")
            p.e(f"s_mul_i32 s{S_T1}, s{S_LW}, {144*1024}")
            p.e(f"s_add_u32 s{S_T1}, s{S_T1}, s{S_T4}")
            p.e(f"s_lshl_b32 s{S_T2}, s{S_C2}, 6")
            p.e(f"s_add_u32 s{SST2}, s{S_T1}, s{S_T2}")
            p.e(f"s_lshl_b32 s{S_T2}, s{S_C3}, 6")
            p.e(f"s_add_u32 s{SST3}, s{S_T1}, s{S_T2}")
        self.stamp(p, 100)

        def p1_reads(g):
            f = FS[g & 1]
            ch = g >> 1
            xs, ws = [], []
            for k2 in range(2):
                kk = 2 * (g & 1) + k2
                for rb in range(4):
                    xs.append(f"ds_read_b128 {vr(f+20*k2+4*rb,4)}, v{VXA+kk} offset:{(ch&3)*16384 + rb*4096}")
                for rd in range(2):
                    ws.append(f"ds_read_b64_tr_b16 {vr(f+20*k2+16+2*rd,2)}, v{VWA} offset:{(g&3)*8192 + (16*k2+4*rd)*128}")
            out = []
            for i in range(4):
                out += [xs[2 * i], xs[2 * i + 1], ws[i]]
            return out

        def p1_mfma(g):
            f = FS[g & 1]
            out = []
            for k2 in range(2):
                for rb in range(4):
                    out.append(mfma(ACC + 16 * rb, f + 20 * k2 + 16, f + 20 * k2 + 4 * rb, None if (g == 0 and k2 == 0) else ACC + 16 * rb))
            return out

        def p2_reads(i):
            f = FS[i & 1]
            ch = i >> 1
            out = []
            st = 4 + 4 * NC
            for k2 in range(2):
                kk = 2 * (i & 1) + k2
                out.append(f"ds_read_b128 {vr(f+st*k2,4)}, v{VXA+kk} offset:{(ch&3)*16384}")
                for cb in range(NC):
                    for rd in range(2):
                        if cb < 2:
                            out.append(f"ds_read_b64_tr_b16 {vr(f+st*k2+4+4*cb+2*rd,2)}, v{VWB0+cb} offset:{(i&3)*8192 + (16*k2+4*rd)*128}")
                        else:
                            out.append(f"ds_read_b64_tr_b16 {vr(f+st*k2+4+4*cb+2*rd,2)}, v{VWH} offset:{(i&3)*8192 + (16*k2+4*rd)*64}")
            return out

        def p2_mfma(i):
            f = FS[i & 1]
            st = 4 + 4 * NC
            out = []
            for k2 in range(2):
                for cb in range(NC):
                    out.append(mfma(ACC + 16 * cb, f + st * k2 + 4 + 4 * cb, f + st * k2, None if (i == 0 and k2 == 0) else ACC + 16 * cb))
            return out

        def ph2_reads(t):
            f = FS[t & 1]
            sl = t & 7
            va, vb = (VAA, VBA) if sl < 4 else (VAA2, VBA2)
            out = []
            for kb in range(4):
                out.append(f"ds_read_b128 {vr(f+8*kb,4)}, v{va} offset:{(sl&3)*16384 + kb*1024}")
                for rd in range(2):
                    out.append(f"ds_read_b64_tr_b16 {vr(f+8*kb+4+2*rd,2)}, v{vb} offset:{(sl&3)*16384 + (16*kb+4*rd)*128}")
            return out

        def ph2_mfma(t):
            f = FS[t & 1]
            acc = ACC if t < 28 else ACC + 16
            out = []
            for kb in range(4):
                first = (t in (0, 28)) and kb == 0
                out.append(mfma(acc, f + 8 * kb + 4, f + 8 * kb, None if first else acc))
            return out

        def bar(first=False):
            if not first:
                p.e("s_waitcnt lgkmcnt(0)")
            p.e("s_barrier")

        def emit(lst):
            for x in lst:
                p.e(x)

        def relu_store(t, src, so, off, tag):
            emit(self.cvt(t, src, 8))
            for i in range(8):
                p.e(f"v_pk_max_i16 v{t+i}, v{t+i}, 0")
            p.e(f"buffer_store_dwordx4 {vr(t,4)}, v{VL16}, {sr(SWS,4)}, s{so} offen offset:{off} sc1", tag=tag)
            p.e(f"buffer_store_dwordx4 {vr(t+4,4)}, v{VL16}, {sr(SWS,4)}, s{so} offen offset:{off+1024} sc1", tag=tag)

        WHT = 232
        for g in range(16):
            bar(g == 0)
            if g == 8:
                for kk in range(4):
                    p.e(f"v_add_u32 v{VXA+kk}, 0x10000, v{VXA+kk}")
            if g == 13:
                self.nonce_issue(p, VN, VZ)
            rd = p1_reads(g)
            if g == 0:
                emit(rd)
                if attn:
                    for h in range(4):
                        for r2 in range(2):
                            p.e(f"ds_read_b64_tr_b16 {vr(WPHI+4*h+2*r2,2)}, v{VPH} offset:{h*512 + r2*128}")
                    p.e("s_waitcnt lgkmcnt(8)")
                    for r2 in range(2):
                        p.e(f"ds_read_b64_tr_b16 {vr(VT4+2*r2,2)}, v15 offset:{r2*128}")
            else:
                emit(interleave(p1_mfma(g - 1), rd, 3))
            if g == 1 and attn:
                for i in range(16):
                    p.e(f"v_xor_b32 v{WPHI+i}, v{WPHI+i}, v{VSG}")
                for i in range(4):
                    p.e(f"v_xor_b32 v{VT4+i}, v{VT4+i}, v{VSG}")
        bar()
        self.stamp(p, 101)
        p.e(f"s_lshl_b32 s{S_T0}, s{S_LW}, 12")
        p.e(f"s_sub_u32 s{S_T0}, s{S_T0}, 0x10000")
        adj = [f"v_add_u32 v{VXA+kk}, s{S_T0}, v{VXA+kk}" for kk in range(4)]
        emit(interleave(p1_mfma(15), adj, 1))

        def start_p2():
            bar()
            emit(p2_reads(0))
        if attn:
            self.epi1_attn(p, ACC, VT4, SEL, CONES, GW, VXA, SST1, SGP, SST3, (VT0, VT1, VT2, VT3), start_p2)
        else:
            T = 176
            for rb in range(4):
                if rb == 3:
                    start_p2()
                if rb:
                    p.e(f"s_add_u32 s{SST1}, s{SST1}, {144*1024}")
                relu_store(T + 8 * rb, ACC + 16 * rb, SST1, 0, "h1")
        self.stamp(p, 102)
        for i in range(1, 16):
            bar()
            if i == 8:
                for kk in range(4):
                    p.e(f"v_add_u32 v{VXA+kk}, 0x10000, v{VXA+kk}")
            emit(interleave(p2_mfma(i - 1), p2_reads(i), 3))
            if i == (c.Y1a if attn else c.Y1f):
                self.stamp(p, 103)
                self.nonce_get(p, VN, VZ)
                self.flag_store(p, VT0, SF_A)
                self.stamp(p, 104)
        bar()
        self.stamp(p, 105)
        emit(p2_mfma(15))
        PHIQ = 200
        if attn:
            QB = 232
            for cb in range(2):
                emit(self.cvt(QB + 8 * cb, ACC + 16 * cb, 8))
            PB = (64, 80)
            p.e(mfma(PB[0], WPHI, QB, None))
            p.e(mfma(PB[1], WPHI + 4, QB + 4, None))
            for h in range(4):
                a, b = self.softmax(PB[h & 1], PHIQ + 8 * h, VT0)
                emit(a + b)
                if h + 2 < 4:
                    p.e(mfma(PB[h & 1], WPHI + 4 * (h + 2), QB + 4 * (h + 2), None))
        else:
            T = 176
            for cb in range(3):
                so, off = (SST2, 2048 * cb) if cb < 2 else (SST3, 0)
                relu_store(T + 8 * cb, ACC + 16 * cb, so, off, "h2")
        self.stamp(p, 106)
        GPV = 64
        for t in range(36):
            bar()
            if t == 0:
                self.stamp(p, 107)
                emit(ph2_reads(0))
                if attn:
                    KZ = (176, 184, 192, 232)
                    p.e(f"v_add_u32 v{VT0}, {RING}, v{VL16}")
                    p.e("s_waitcnt lgkmcnt(4)")
                    for h in range(4):
                        for u in range(2):
                            p.e(f"ds_read_b128 {vr(KZ[h]+4*u,4)}, v{VT0} offset:{h*2048+u*1024}")
                    p.e("s_waitcnt lgkmcnt(0)")
                    NB = (64, 80)
                    OP = 240

                    def nm(h):
                        p.e(mfma(NB[h & 1], KZ[h], PHIQ + 8 * h, None))
                        p.e(mfma(NB[h & 1], KZ[h] + 4, PHIQ + 8 * h + 4, NB[h & 1]))
                    nm(0)
                    nm(1)
                    for h in range(4):
                        N = NB[h & 1]
                        p.e(f"v_add_f32 v{VT2}, 0x358637bd, v{N+8}")
                        p.e(f"v_rcp_f32 v{VT2}, v{VT2}")
                        for i in range(0, 8, 2):
                            p.e(f"v_pk_mul_f32 {vr(N+i,2)}, {vr(N+i,2)}, {vr(VT2,2)} op_sel_hi:[1,0]")
                        emit(self.cvt(OP + 4 * h, N, 4))
                        p.e(f"buffer_store_dwordx4 {vr(OP+4*h,4)}, v{VL16}, {sr(SWS,4)}, s{SST2} offen offset:{h*1024} sc1", tag="o")
                        if h + 2 < 4:
                            nm(h + 2)
                    self.stamp(p, 108)
            else:
                emit(interleave(ph2_mfma(t - 1), ph2_reads(t), 3))
            if t == c.Y2:
                self.stamp(p, 109)
                self.flag_store(p, VT0, SF_B)
                self.stamp(p, 110)
            if t == 33:
                for hg in range(8):
                    p.e(f"buffer_load_dword v{GPV+hg}, v{VG}, {sr(SWS,4)}, 0 offen offset:{hg*512} sc1", tag="gp")
        p.e("s_waitcnt lgkmcnt(0)")
        emit(ph2_mfma(35))
        self.stamp(p, 111)
        p.wait_vm("gp")
        for i in range(4):
            p.e(f"v_add_f32 v{GPV+i}, v{GPV+i}, v{GPV+4+i}")
        p.e(f"v_add_f32 v{GPV}, v{GPV}, v{GPV+1}")
        p.e(f"v_add_f32 v{GPV+2}, v{GPV+2}, v{GPV+3}")
        p.e(f"v_add_f32 v{GPV}, v{GPV}, v{GPV+2}")
        p.e(f"v_mul_f32 v{GPV}, 0xbfb8aa3b, v{GPV}")
        p.e(f"v_exp_f32 v{GPV}, v{GPV}")
        p.e(f"v_add_f32 v{GPV}, 1.0, v{GPV}")
        p.e(f"v_rcp_f32 v{GPV}, v{GPV}")
        p.e(f"v_sub_f32 v{GPV+2}, 1.0, v{GPV}")
        for i in range(0, 16, 2):
            p.e(f"v_pk_mul_f32 {vr(ACC+i,2)}, {vr(ACC+i,2)}, {vr(GPV+2,2)} op_sel_hi:[1,0]")
        for i in range(0, 16, 2):
            p.e(f"v_pk_fma_f32 {vr(ACC+i,2)}, {vr(ACC+16+i,2)}, {vr(GPV,2)}, {vr(ACC+i,2)} op_sel_hi:[1,0,1]")
        emit(self.cvt(80, ACC, 8))
        p.e(f"buffer_store_dwordx4 {vr(80,4)}, v{VOUT}, {sr(SOUT,4)}, 0 offen", tag="out")
        p.e(f"buffer_store_dwordx4 {vr(84,4)}, v{VOUT}, {sr(SOUT,4)}, 0 offen offset:16", tag="out")
        if c.dbgtime:
            p.wait_vm0()
            p.e("s_memrealtime s[98:99]")
            p.e("s_waitcnt lgkmcnt(0)")
            p.e("s_not_b32 s96, s96")
            p.e("v_mov_b32 v80, s96")
            p.e("v_mov_b32 v81, s98")
            p.e("s_mov_b64 exec, 1")
            p.e(f"global_atomic_umax v{VZ}, v80, {sr(P_DBG,2)} offset:16")
            p.e(f"global_atomic_umax v{VZ}, v81, {sr(P_DBG,2)} offset:20")
            p.e("s_mov_b64 exec, -1")
        if c.stamps:
            self.stamp(p, 112)
            p.wait_vm0()
            self.stamp(p, 113)
            self.stamps_out(p)
        p.e("s_endpgm")
        return p

    def epi1_attn(self, p, ACC, WH, SEL, CONES, GW, VXA, SKV, SGP, SGCH, T, start_p2):
        def emit(lst):
            for x in lst:
                p.e(x)
        KVB = 136
        PHI = 168
        VNP = 248
        PTP = 128
        KV = 232
        PB = (32, 48)
        VN, PT = 64, 80
        XG = 120
        GX = 96
        for kk in range(4):
            p.e(f"v_add_u32 v{T[kk]}, s{SGCH}, v{VXA+kk}")
            p.e(f"ds_read_b128 {vr(GX+4*kk,4)}, v{T[kk]}")
        p.e(f"v_lshlrev_b32 v{XG}, 2, v0")
        for rb in range(4):
            emit(self.cvt(KVB + 8 * rb, ACC + 16 * rb, 8))
            if rb == 1:
                p.e(mfma(PB[0], WH, KVB, None))
                p.e(mfma(PB[1], WH, KVB + 8, None))
        p.wait_vm("gw")
        p.e("s_waitcnt lgkmcnt(0)")
        for kk in range(4):
            p.e(mfma(PT, GW + 4 * kk, GX + 4 * kk, None if kk == 0 else PT))
        p.e(mfma(VN, KVB + 4, SEL, CONES))
        a, b = self.softmax(PB[0], PHI, T[0])
        emit(a)
        p.e("s_mov_b32 exec_hi, 0")
        p.e(f"buffer_store_dword v{PT}, v{XG}, {sr(SWS,4)}, s{SGP} offen sc1", tag="gps")
        p.e("s_mov_b64 exec, -1")
        emit(b)
        for rb in range(4):
            p.e(mfma(PT, PHI, SEL, None))
            p.e(mfma(PT, PHI + 4, SEL + 4, PT))
            if rb + 2 < 4:
                p.e(mfma(PB[rb & 1], WH, KVB + 8 * (rb + 2), None))
            emit(self.cvt(VNP, VN, 8))
            if rb + 1 < 4:
                p.e(mfma(VN, KVB + 8 * (rb + 1) + 4, SEL, CONES))
                a, b = self.softmax(PB[(rb + 1) & 1], PHI, T[0])
                emit(a)
            else:
                start_p2()
                p.e(f"v_lshrrev_b32 v{T[0]}, 5, v0")
                p.e(f"v_and_b32 v{T[1]}, 31, v0")
                p.e(f"v_mad_u32_u24 v{T[0]}, v{T[0]}, 17, v{T[1]}")
                p.e(f"v_lshlrev_b32 v{T[0]}, 4, v{T[0]}")
            emit(self.cvt(PTP, PT, 8))
            p.e(mfma(KV, PTP, VNP, None if rb == 0 else KV))
            p.e(mfma(KV, PTP + 4, VNP + 4, KV))
            if rb + 1 < 4:
                emit(b)
        emit(self.cvt(PTP, KV, 8))
        p.e("s_mov_b32 exec_lo, 0x1ffff")
        p.e("s_mov_b32 exec_hi, 0x1ffff")
        p.e(f"buffer_store_dwordx4 {vr(PTP,4)}, v{T[0]}, {sr(SWS,4)}, s{SKV} offen sc1", tag="kvs")
        p.e(f"buffer_store_dwordx4 {vr(PTP+4,4)}, v{T[0]}, {sr(SWS,4)}, s{SKV} offen offset:{34*16} sc1", tag="kvs")
        p.e("s_mov_b64 exec, -1")

    def dma(self, p, v, srd, soff, m0s, m0c, tag, extra="", pre=None):
        p.e(f"s_add_u32 m0, s{m0s}, {m0c}")
        if pre:
            p.e(pre)
        p.e(f"buffer_load_dwordx4 v{v}, {sr(srd,4)}, {soff} offen {extra} lds".replace("  ", " "), tag=tag)

    def xhalf(self, p, hf):
        q = hf >> 1
        for i in range(2):
            ro = 64 * (hf & 1) + 32 * i
            self.dma(p, VX, SX, f"s{S_T0}", S_WL1K, q * 16384 + ro * 128, ("x", hf), pre=f"s_add_u32 s{S_T0}, s{S_KX+q}, {ro*1024}")

    def w1stage(self, p, g):
        q = g >> 1
        slot = RING + (g & 3) * 8192
        for i in range(2):
            ro = 2 * (g & 1) + i
            src = ("0", f"s{S_RS16}", f"s{S_RS32}", f"s{S_RS48}")[ro]
            self.dma(p, VW1, SW1, f"s{S_T0}", S_W1L, slot + i * 2048, ("w", g), pre=f"s_add_u32 s{S_T0}, s{S_KW+q}, {src}")

    VZ, VN, VF, VFO32, VFO16, VKV, VPF, VPF2 = 12, 13, 14, 15, 16, 17, 18, 19
    LSEL = 192
    S_WL2K, S_AB, S_FO1, S_FO2, S_FO3, S_FOK, S_KVB, S_WL512 = 25, 18, 20, 21, 22, 23, 26, 16

    def loader_common(self, p):
        c = self.c
        self.stamp(p, 114)
        self.xhalf(p, 0)
        self.xhalf(p, 1)
        self.w1stage(p, 0)
        p.e(f"s_lshl_b32 s{self.S_WL512}, s{S_LW}, 9")
        p.e(f"v_lshlrev_b32 v{VA}, 4, v0")
        p.e(f"s_lshl_b32 s{S_T0}, s{S_UNIT}, 11")
        p.e(f"s_add_u32 s{S_T0}, s{S_T0}, s{self.S_WL512}")
        self.dma(p, VA, SPHI, f"s{S_T0}", self.S_WL512, 7 * 16384, ("w", 0), pre="s_mov_b32 exec_hi, 0")
        p.e("s_mov_b64 exec, -1")
        self.xhalf(p, 2)
        self.w1stage(p, 1)
        self.stamp(p, 115)
        VZ, VFO32, VFO16, VKV, VPF, VPF2 = self.VZ, self.VFO32, self.VFO16, self.VKV, self.VPF, self.VPF2
        p.e(f"v_mov_b32 v{VZ}, 0")
        p.e(f"s_lshl_b32 s{self.S_WL2K}, s{S_LW}, 11")
        p.e(f"s_lshl_b32 s{S_T2}, s{S_UNIT}, 7")
        p.e(f"s_lshl_b32 s{S_T3}, s{S_C2}, 1")
        p.e(f"s_lshl_b32 s{S_T4}, s{S_C3}, 1")
        p.e(f"s_cmp_eq_u32 s{S_ROLE}, 0")
        p.e(f"s_cselect_b32 s{S_T3}, s{S_T2}, s{S_T3}")
        p.e(f"s_cselect_b32 s{S_T4}, s{S_T2}, s{S_T4}")
        p.e(f"s_mul_i32 s{S_T1}, s{S_LW}, s{S_RS}")
        p.e(f"s_lshl_b32 s{S_T1}, s{S_T1}, 3")
        p.e(f"s_add_u32 s{S_T2}, s{S_T3}, s{S_T1}")
        p.e(f"v_add3_u32 v{VW2}, v{LT2}, v{LT3}, s{S_T2}")
        p.e(f"v_lshrrev_b32 v{VW3}, 2, v0")
        p.e(f"v_mul_u32_u24 v{VW3}, s{S_RS}, v{VW3}")
        p.e(f"v_and_b32 v{LT3}, 3, v0")
        p.e(f"v_lshl_add_u32 v{VW3}, v{LT3}, 4, v{VW3}")
        p.e(f"s_add_u32 s{S_T2}, s{S_T4}, s{S_T1}")
        p.e(f"v_add_u32 v{VW3}, s{S_T2}, v{VW3}")
        p.e(f"v_and_b32 v{VFO16}, 15, v0")
        p.e(f"s_and_b32 s{S_T1}, s{S_M}, 7")
        p.e(f"s_lshl_b32 s{S_T1}, s{S_T1}, 6")
        p.e(f"s_lshl_b32 s{S_T2}, s{S_LW}, 4")
        p.e(f"s_add_u32 s{S_T1}, s{S_T1}, s{S_T2}")
        p.e(f"v_add_u32 v{VPF}, s{S_T1}, v{VFO16}")
        p.e(f"v_mul_u32_u24 v{VPF}, s{S_RS}, v{VPF}")
        p.e(f"v_mov_b32 v{LT1}, s{S_T3}")
        p.e(f"v_mov_b32 v{LT3}, s{S_T4}")
        p.e(f"v_cmp_gt_u32 vcc, 16, v0")
        p.e(f"v_lshlrev_b32 v{VFO16}, 2, v{VFO16}")
        p.e(f"v_and_b32 v{VFO32}, 31, v0")
        p.e(f"v_cndmask_b32 v{LT1}, v{LT3}, v{LT1}, vcc")
        p.e(f"v_add_u32 v{VPF}, v{VPF}, v{LT1}")
        p.e(f"v_lshlrev_b32 v{VFO32}, 2, v{VFO32}")
        p.e(f"s_lshl_b32 s{S_T1}, s{S_M}, 3")
        p.e(f"s_add_u32 s{S_T1}, s{S_T1}, s{S_UNIT}")
        p.e(f"s_lshl_b32 s{S_T1}, s{S_T1}, 2")
        p.e(f"s_add_u32 s{S_T1}, s{S_T1}, s{S_LW}")
        p.e(f"s_lshl_b32 s{S_T1}, s{S_T1}, 7")
        p.e(f"v_lshl_add_u32 v{VPF2}, v0, 16, s{S_T1}")
        p.e(f"v_lshl_or_b32 v{VB}, v{LT0}, 10, v{LT2}")
        p.e(f"s_lshl_b32 s{S_T1}, s{S_NN}, 7")
        p.e(f"s_lshl_b32 s{S_T2}, s{S_LW}, 14")
        p.e(f"s_add_u32 s{S_T1}, s{S_T1}, s{S_T2}")
        p.e(f"v_add_u32 v{VB}, s{S_T1}, v{VB}")
        p.e(f"s_lshl_b32 s{S_T1}, s{S_MM}, 1")
        p.e(f"s_lshr_b32 s{S_T2}, s{S_LW}, 1")
        p.e(f"s_add_u32 s{S_T1}, s{S_T1}, s{S_T2}")
        p.e(f"s_mul_i32 s{S_T1}, s{S_T1}, {144*1024}")
        p.e(f"s_and_b32 s{S_T2}, s{S_LW}, 1")
        p.e(f"s_lshl_b32 s{S_T2}, s{S_T2}, 11")
        p.e(f"s_add_u32 s{self.S_AB}, s{S_T1}, s{S_T2}")
        p.e(f"s_lshr_b32 s{S_T1}, s{S_MM}, 1")
        p.e(f"s_lshl_b32 s{S_T1}, s{S_T1}, 7")
        p.e(f"s_add_u32 s{self.S_FO1}, s{S_T1}, {F1}")
        p.e(f"s_lshl_b32 s{S_T1}, s{S_MM}, 7")
        p.e(f"s_add_u32 s{self.S_FO2}, s{S_T1}, {F2}")
        p.e(f"s_add_u32 s{self.S_FO3}, s{S_T1}, {F3}")
        p.e(f"s_lshl_b32 s{S_T1}, s{S_UNIT}, 2")
        p.e(f"s_add_u32 s{S_T1}, s{S_T1}, s{S_LW}")
        p.e(f"s_lshl_b32 s{S_T2}, s{S_T1}, 7")
        p.e(f"s_add_u32 s{self.S_FOK}, s{S_T2}, {FK}")
        p.e(f"s_mul_i32 s{S_T1}, s{S_T1}, {16*1152}")
        p.e(f"s_add_u32 s{self.S_KVB}, s{S_T1}, {KVP}")
        p.e(f"v_lshrrev_b32 v{LT0}, 5, v0")
        p.e(f"v_and_b32 v{LT1}, 31, v0")
        p.e(f"v_min_u32 v{LT1}, 16, v{LT1}")
        p.e(f"v_mad_u32_u24 v{VKV}, v{LT0}, 17, v{LT1}")
        p.e(f"v_lshlrev_b32 v{VKV}, 4, v{VKV}")
        self.build_sel(p, self.LSEL, LT0, LT1, LT2)
        self.stamp(p, 116)
        for g in range(2, 4):
            self.xhalf(p, g + 1)
            self.w1stage(p, g)
        self.stamp(p, 117)
        for b in range(13):
            p.wait_vm([("w", b), ("x", 2 * (b >> 1)), ("x", 2 * (b >> 1) + 1)])
            p.e("s_barrier")
            self.stamp(p, b)
            if b >= 1:
                g = b + 3
                if g + 1 < 16:
                    self.xhalf(p, g + 1)
                self.w1stage(p, g)
        p.e(f"s_cmp_eq_u32 s{S_ROLE}, 0")
        p.fence()
        p.e("s_cbranch_scc0 L_load_ffn")

    def loader_role(self, attn, base):
        c = self.c
        p = Prog("load_attn" if attn else "load_ffn")
        p.vm = list(base.vm)
        p.done = set(getattr(base, "done", set()))
        p.nbar = base.nbar
        if not attn:
            p.raw("L_load_ffn:")
        VZ, VN, VF, VFO32, VFO16, VKV, VPF, VPF2 = self.VZ, self.VN, self.VF, self.VFO32, self.VFO16, self.VKV, self.VPF, self.VPF2
        SEL = self.LSEL
        S_WL2K, S_AB, S_FO1, S_FO2, S_FO3, S_FOK, S_KVB, S_WL512 = self.S_WL2K, self.S_AB, self.S_FO1, self.S_FO2, self.S_FO3, self.S_FOK, self.S_KVB, self.S_WL512

        def w2stage(i):
            q = i >> 1
            slot = RING + (i & 3) * 8192
            src = f"s{S_RS32}" if (i & 1) else "0"
            self.dma(p, VW2, SW1, f"s{S_T0}", S_WL1K, slot, ("w2", i), pre=f"s_add_u32 s{S_T0}, s{S_KW+q}, {src}")
            if not attn:
                self.dma(p, VW3, SW1, f"s{S_T0}", S_WL512, slot + 4096, ("w2", i), pre="s_mov_b32 exec_hi, 0")
                p.e("s_mov_b64 exec, -1")

        def a_part(t):
            ln = LINE_ORDER[t]
            self.dma(p, VA, SWS, f"s{S_T0}", S_WL2K, (t & 7) * 16384, ("a", t), "sc1", pre=f"s_add_u32 s{S_T0}, s{S_AB}, {ln*4096}")
            p.e(f"buffer_load_dwordx4 v{VA}, {sr(SWS,4)}, s{S_T0} offen offset:1024 sc1 lds", tag=("a", t))

        def b_part(t):
            ln = LINE_ORDER[t]
            srd, row0 = (SW2, 64 * ln) if ln < 28 else (SWO, 64 * (ln - 28))
            for i in range(2):
                self.dma(p, VB, srd, f"s{S_T0}", S_WL2K, (t & 7) * 16384 + 8192 + i * 1024, ("b", t), pre=f"s_mov_b32 s{S_T0}, {(row0 + 8*i)*1024}")

        for b in range(13, 17):
            if b < 16:
                p.wait_vm([("w", b), ("x", 2 * (b >> 1)), ("x", 2 * (b >> 1) + 1)])
            p.e("s_barrier")
            self.stamp(p, b)
            w2stage(b - 13)
            if b == 13:
                if c.p2_prefetch:
                    p.e("s_mov_b32 exec_hi, 0")
                    p.e(f"buffer_load_dword v{VF}, v{VPF}, {sr(SW1,4)}, 0 offen", tag="pf")
                    p.e("s_mov_b64 exec, -1")
                self.nonce_issue(p, VN, VZ)
            if b == 16 and attn and c.w2_prefetch:
                p.e(f"buffer_load_dword v{VF}, v{VPF2}, {sr(SW2,4)}, 0 offen", tag="pf")
                p.e(f"buffer_load_dword v{VF}, v{VPF2}, {sr(SWO,4)}, 0 offen", tag="pf")
        self.nonce_get(p, VN, VZ)
        nb = na = 0
        f1ok = False
        Bstart = c.Bstart_a if attn else c.Bstart_f
        F1chk = c.F1chk_a if attn else c.F1chk_f
        nA0 = 8 if attn else c.Alead
        for i in range(17):
            if i < 16:
                p.wait_vm([("w2", i)])
            p.e("s_barrier")
            self.stamp(p, 17 + i)
            if 1 <= i <= 12:
                w2stage(i + 3)
            nfree = (i - 2) // 2 + 1 if i >= 2 else 0
            if i == F1chk - 2:
                self.poll_issue(p, VF, VFO32, S_FO1, "f1")
            if i == F1chk:
                self.stamp(p, 118)
                self.poll_check(p, VF, VFO32, S_FO1, "f1")
                self.stamp(p, 119)
                f1ok = True
            budget = 2 if i < 16 else 99
            while budget > 0:
                if f1ok and na < min(nfree, nA0) and na <= nb:
                    a_part(na); na += 1
                elif i >= Bstart and nb < nfree:
                    b_part(nb); nb += 1
                elif f1ok and na < min(nfree, nA0):
                    a_part(na); na += 1
                else:
                    break
                budget -= 1
            if attn and i == 14:
                self.poll_issue(p, VF, VFO16, S_FOK, "fk")
        assert nb == 8 and na == nA0, (nb, na)
        if attn:
            self.stamp(p, 120)
            self.poll_check(p, VF, VFO16, S_FOK, "fk")
            self.stamp(p, 121)
            KVL = 64
            ACC = 32
            for m in range(16):
                if m:
                    p.e(f"s_add_u32 s{S_KVB}, s{S_KVB}, 1152")
                for u in range(2):
                    p.e(f"buffer_load_dwordx4 {vr(KVL+8*m+4*u,4)}, v{VKV}, {sr(SWS,4)}, s{S_KVB} offen offset:{u*34*16} sc1", tag=("kv", m))
                if m >= 6:
                    mm_ = m - 6
                    p.wait_vm([("kv", mm_)])
                    for u in range(2):
                        p.e(mfma(ACC, SEL + 4 * u, KVL + 8 * mm_ + 4 * u, None if (mm_ == 0 and u == 0) else ACC))
            for m in range(10, 16):
                p.wait_vm([("kv", m)])
                for u in range(2):
                    p.e(mfma(ACC, SEL + 4 * u, KVL + 8 * m + 4 * u, ACC))
            p.e(f"s_add_u32 s{S_T0}, s{S_WL2K}, {RING}")
            p.e(f"v_add_u32 v{LT0}, s{S_T0}, v{VA}")
            for x in self.cvt(48, ACC, 8):
                p.e(x)
            p.e(f"ds_write_b128 v{LT0}, {vr(48,4)}")
            p.e(f"ds_write_b128 v{LT0}, {vr(52,4)} offset:1024")
            p.e("s_waitcnt lgkmcnt(0)")
            self.stamp(p, 122)
        nextA = nA0
        for t in range(36):
            p.wait_vm([("a", t), ("b", t)])
            p.e("s_barrier")
            self.stamp(p, 34 + t)
            while nextA < 36 and nextA <= t + c.Alead:
                if nextA == 16:
                    self.stamp(p, 110)
                    self.poll_check(p, VF, VFO16, S_FO2, "f2")
                    self.stamp(p, 111)
                if nextA == 28:
                    self.stamp(p, 112)
                    self.poll_check(p, VF, VFO16, S_FO3, "f3")
                    self.stamp(p, 113)
                a_part(nextA)
                nextA += 1
            if t >= 1 and t + 7 < 36:
                b_part(t + 7)
            if t + c.Alead == 16 - 3:
                self.poll_issue(p, VF, VFO16, S_FO2, "f2")
            if t + c.Alead == 28 - 3:
                self.poll_issue(p, VF, VFO16, S_FO3, "f3")
        self.stamps_out(p)
        p.e("s_endpgm")
        return p

    def build(self):
        head = Prog("head")
        self.prologue(head)
        self.loader_common(head)
        la = self.loader_role(True, head)
        lf = self.loader_role(False, head)
        disp = Prog("disp")
        disp.raw("L_exit:")
        disp.e("s_endpgm")
        disp.raw("L_compute:")
        disp.e(f"s_cmp_eq_u32 s{S_ROLE}, 0")
        disp.e("s_cbranch_scc1 L_comp_attn")
        cf = self.compute(False)
        ca = self.compute(True)
        nb = {q.name: q.nbar for q in (la, lf, cf, ca)}
        assert len(set(nb.values())) == 1, nb
        hdr = open("gated_mix__linear_kernel_hedgehog__dense_activation_relu__prompt.s.ref").read().split("; Override")[0]
        out = [hdr.rstrip("\n"),
               "; @launch grid=(256,1,1) block=(512,1,1) lds=163840",
               '.amdgcn_target "amdgcn-amd-amdhsa--gfx950"', ".text", f".globl {KNAME}", ".p2align 8",
               f".type {KNAME},@function", f"{KNAME}:"]
        out += [head.text(), la.text(), ".p2align 6", lf.text(), ".p2align 6", disp.text(), cf.text(), ".p2align 6", ca.text(), ".p2align 6"]
        out.append("L_code_end:")
        out.append('.section .rodata,"a"\n.p2align 6')
        out.append(f".amdhsa_kernel {KNAME}")
        out.append("  .amdhsa_next_free_vgpr 256\n  .amdhsa_next_free_sgpr 102\n  .amdhsa_accum_offset 256\n  .amdhsa_group_segment_fixed_size 0\n  .amdhsa_kernarg_size 88\n  .amdhsa_user_sgpr_count 2\n  .amdhsa_user_sgpr_kernarg_segment_ptr 1\n  .amdhsa_system_sgpr_workgroup_id_x 1")
        out.append(".end_amdhsa_kernel")
        info = {q.name: (len(q.lines), q.nops) for q in (head, la, lf, cf, ca)}
        return "\n".join(out) + "\n", info


def generate(path, **kw):
    cfg = Cfg()
    for k, v in kw.items():
        assert hasattr(cfg, k), k
        setattr(cfg, k, v)
    txt, info = G(cfg).build()
    open(path, "w").write(txt)
    return info


if __name__ == "__main__":
    path = sys.argv[1] if len(sys.argv) > 1 else "gated_mix__linear_kernel_hedgehog__dense_activation_relu__prompt.s"
    kw = {}
    for a in sys.argv[2:]:
        k, v = a.split("=")
        kw[k] = int(v)
    print(generate(path, **kw))
```

```python
import sys
from asmlib import Prog, vr, sr, interleave

KNAME = "gated_mix__linear_kernel_hedgehog__dense_activation_relu__prompt_kernel"


class Cfg:
    rotR = 2
    rotX = 0
    Y1f = 9
    Y1a = 6
    Y2 = 5
    Alead = 4
    stamps = 0
    code_prefetch = 1
    p2_prefetch = 1
    w2_prefetch = 1
    Bstart_f = 5
    Bstart_a = 2
    F1chk_f = 12
    F1chk_a = 5
    dbgtime = 0
    pk = 1


ACT = 0
KVP = 0x900000
GP = 0x9A0000
FL = 0x9C0000
F1, F2, F3, FK = FL, FL + 0x1000, FL + 0x2000, FL + 0x3000
STAMPS = 0xA00000
WS_SIZE = 0xB00000
RING = 131072

S_WAVE, S_M, S_ROLE, S_UNIT, S_ROT, S_MM, S_NN, S_LW = 3, 4, 5, 6, 7, 8, 9, 10
S_T0, S_T1, S_T2, S_T3 = 11, 12, 13, 14
S_NONCE = 15
P_X, P_WQKV, P_WPHI, P_WO, P_BX, P_W1, P_W2, P_GATE, P_OUT, P_DBG, P_WS = 16, 18, 20, 22, 24, 26, 28, 30, 32, 34, 36
S_L2E = 38
SX, SW1, SW2, SWO, SWS, SOUT, SPHI = 40, 44, 48, 52, 56, 60, 64
S_KX = 68
S_KW = 76
S_C = 68
S_C1, S_C2, S_C3, S_RS, S_WL1K, S_W1L, S_RS16, S_RS32, S_RS48 = 84, 85, 86, 87, 88, 89, 90, 91, 92
S_CNT = 100
S_T4 = 101

LINE_ORDER = [7 * i + r for i in range(4) for r in (0, 1, 4, 5)] + [7 * i + r for i in range(4) for r in (2, 3, 6)] + [28 + i for i in range(8)]
assert len(LINE_ORDER) == 36

MF = "v_mfma_f32_32x32x16_bf16"
VX, VW1, VW2, VW3, VA, VB = 2, 3, 4, 5, 6, 7
LT0, LT1, LT2, LT3 = 8, 9, 10, 11
VST0, VST1 = 30, 31


def mfma(d, a, b, c):
    cs = "0" if c is None else vr(c, 16)
    return f"{MF} {vr(d,16)}, {vr(a,4)}, {vr(b,4)}, {cs}"


class G:
    def __init__(self, cfg):
        self.c = cfg
        self.uid = 0

    def lab(self, s):
        self.uid += 1
        return f"L_{s}_{self.uid}"

    def stamp(self, p, idx):
        if not self.c.stamps:
            return
        p.e(f"{'s_memtime' if self.c.stamps == 2 else 's_memrealtime'} s[98:99]")
        p.e("s_waitcnt lgkmcnt(0)")
        p.e(f"v_writelane_b32 v{VST0 + idx // 64}, s98, {idx % 64}")

    def stamps_out(self, p):
        if not self.c.stamps:
            return
        p.e(f"s_lshl_b32 s{S_T0}, s2, 3")
        p.e(f"s_add_u32 s{S_T0}, s{S_T0}, s{S_WAVE}")
        p.e(f"s_lshl_b32 s{S_T0}, s{S_T0}, 9")
        p.e(f"s_add_u32 s{S_T0}, s{S_T0}, {STAMPS}")
        p.e(f"v_lshlrev_b32 v1, 2, v0")
        p.e(f"buffer_store_dword v{VST0}, v1, {sr(SWS,4)}, s{S_T0} offen")
        p.e(f"buffer_store_dword v{VST1}, v1, {sr(SWS,4)}, s{S_T0} offen offset:256")

    def prologue(self, p):
        c = self.c
        if c.stamps:
            p.e(f"{'s_memtime' if c.stamps == 2 else 's_memrealtime'} s[96:97]")
        if c.dbgtime:
            p.e("s_memrealtime s[96:97]")
        p.e(f"s_load_dwordx16 s[16:31], s[0:1], 0")
        p.e(f"s_load_dwordx4 s[32:35], s[0:1], 64")
        p.e(f"s_load_dwordx2 s[36:37], s[0:1], 80")
        p.e("s_cmp_ge_u32 s2, 256")
        p.e("s_cbranch_scc1 L_exit")
        if c.code_prefetch:
            p.e(f"s_getpc_b64 s[12:13]")
            p.raw("L_pc0:")
            p.e(f"s_lshr_b32 s{S_T0}, s2, 3")
            p.e(f"s_lshl_b32 s{S_T0}, s{S_T0}, 11")
            p.e(f"s_min_u32 s{S_T0}, s{S_T0}, L_code_end-L_pc0-2048")
            p.e(f"v_lshl_add_u32 v2, v0, 2, s{S_T0}")
            p.e(f"global_load_dword v255, v2, s[12:13]", tag="cpf")
        p.e("v_lshrrev_b32 v1, 6, v0")
        p.e("v_and_b32 v0, 63, v0")
        p.e(f"v_readfirstlane_b32 s{S_WAVE}, v1")
        p.e(f"s_lshr_b32 s{S_T1}, s2, 3")
        p.e(f"s_and_b32 s{S_T0}, s2, 7")
        p.e(f"s_and_b32 s{S_M}, s{S_T0}, 1")
        p.e(f"s_lshl_b32 s{S_M}, s{S_M}, 3")
        p.e(f"s_and_b32 s{S_NN}, s{S_T1}, 7")
        p.e(f"s_add_u32 s{S_M}, s{S_M}, s{S_NN}")
        p.e(f"s_lshr_b32 s{S_T2}, s{S_T1}, 3")
        p.e(f"s_lshr_b32 s{S_ROLE}, s{S_T2}, 1")
        p.e(f"s_and_b32 s{S_UNIT}, s{S_T0}, 6")
        p.e(f"s_and_b32 s{S_T3}, s{S_T2}, 1")
        p.e(f"s_add_u32 s{S_UNIT}, s{S_UNIT}, s{S_T3}")
        p.e(f"s_lshl_b32 s{S_MM}, s{S_T0}, 2")
        p.e(f"s_add_u32 s{S_MM}, s{S_MM}, s{S_T2}")
        p.e(f"s_add_u32 s{S_ROT}, s{S_M}, s{S_T2}")
        p.e(f"s_and_b32 s{S_ROT}, s{S_ROT}, {c.rotR-1}")
        p.e(f"s_mul_i32 s{S_ROT}, s{S_ROT}, {8//c.rotR}")
        if c.rotX:
            p.e(f"s_lshr_b32 s{S_T3}, s{S_T0}, 1")
            p.e(f"s_lshl_b32 s{S_T2}, s{S_T0}, 1")
            p.e(f"s_add_u32 s{S_T3}, s{S_T3}, s{S_T2}")
            p.e(f"s_and_b32 s{S_T3}, s{S_T3}, {8//c.rotR-1}")
            p.e(f"s_add_u32 s{S_ROT}, s{S_ROT}, s{S_T3}")
        p.e(f"s_and_b32 s{S_LW}, s{S_WAVE}, 3")
        for s in (SX, SW1, SW2, SWO, SWS, SOUT, SPHI):
            p.e(f"s_mov_b32 s{s+3}, 0x20000")
        p.e(f"s_mov_b32 s{SX+2}, {2048*1024}")
        p.e(f"s_mov_b32 s{SW2+2}, {1792*1024}")
        p.e(f"s_mov_b32 s{SWO+2}, {512*1024}")
        p.e(f"s_mov_b32 s{SWS+2}, {WS_SIZE}")
        p.e(f"s_mov_b32 s{SOUT+2}, {2048*1024}")
        p.e(f"s_mov_b32 s{SPHI+2}, {32*512}")
        p.e(f"s_mul_i32 s{S_T0}, s{S_UNIT}, 224")
        p.e(f"s_bitcmp1_b32 s{S_UNIT}, 0")
        p.e(f"s_cselect_b32 s{S_C1}, 32, 0")
        p.e(f"s_cselect_b32 s{S_C3}, 0, 192")
        p.e(f"s_add_u32 s{S_C1}, s{S_C1}, s{S_T0}")
        p.e(f"s_add_u32 s{S_C2}, s{S_C1}, 128")
        p.e(f"s_add_u32 s{S_C3}, s{S_C3}, s{S_T0}")
        p.e(f"s_lshl_b32 s{S_WL1K}, s{S_LW}, 10")
        p.e(f"v_lshrrev_b32 v{LT0}, 3, v0")
        p.e(f"v_and_b32 v{LT1}, 7, v0")
        p.e(f"v_lshrrev_b32 v{LT2}, 4, v0")
        p.e(f"s_and_b32 s{S_T3}, s{S_LW}, 1")
        p.e(f"s_lshl_b32 s{S_T1}, s{S_T3}, 2")
        p.e(f"v_or_b32 v{LT2}, s{S_T1}, v{LT2}")
        p.e(f"v_xor_b32 v{LT2}, v{LT2}, v{LT1}")
        p.e(f"v_lshlrev_b32 v{LT2}, 4, v{LT2}")
        p.e(f"v_lshl_or_b32 v{VX}, v{LT0}, 10, v{LT2}")
        p.e(f"s_lshl_b32 s{S_T1}, s{S_M}, 17")
        p.e(f"s_lshl_b32 s{S_T2}, s{S_LW}, 13")
        p.e(f"s_add_u32 s{S_T1}, s{S_T1}, s{S_T2}")
        p.e(f"v_add_u32 v{VX}, s{S_T1}, v{VX}")
        p.e(f"s_lshl_b32 s{S_T0}, s{S_UNIT}, 7")
        p.e(f"s_lshl_b32 s{S_T1}, s{S_T3}, 10")
        p.e(f"s_add_u32 s{S_T0}, s{S_T0}, s{S_T1}")
        p.e(f"s_add_u32 s{S_T0}, s{S_T0}, 1024")
        p.e(f"s_lshl_b32 s{S_T1}, s{S_C1}, 1")
        p.e(f"s_lshl_b32 s{S_T2}, s{S_T3}, 7")
        p.e(f"s_add_u32 s{S_T1}, s{S_T1}, s{S_T2}")
        p.e(f"s_mov_b32 s{S_RS}, 3072")
        p.e(f"s_cmp_eq_u32 s{S_ROLE}, 0")
        p.e(f"s_cselect_b32 s{S_T0}, s{S_T0}, s{S_T1}")
        p.e(f"s_cselect_b32 s{S_RS}, s{S_RS}, 3584")
        p.e(f"s_lshl_b32 s{SW1+2}, s{S_RS}, 9")
        p.e(f"v_bfe_u32 v{LT2}, v0, 4, 1")
        p.e(f"v_lshlrev_b32 v{LT2}, 2, v{LT2}")
        p.e(f"v_xor_b32 v{LT2}, v{LT2}, v{LT1}")
        p.e(f"v_lshlrev_b32 v{LT2}, 4, v{LT2}")
        p.e(f"v_mul_u32_u24 v{LT3}, s{S_RS}, v{LT0}")
        p.e(f"s_lshr_b32 s{S_T1}, s{S_LW}, 1")
        p.e(f"s_lshl_b32 s{S_W1L}, s{S_T3}, 12")
        p.e(f"s_lshl_b32 s{S_T2}, s{S_T1}, 10")
        p.e(f"s_add_u32 s{S_W1L}, s{S_W1L}, s{S_T2}")
        p.e(f"s_lshl_b32 s{S_T2}, s{S_T3}, 5")
        p.e(f"v_xor_b32 v{VW1}, s{S_T2}, v{LT2}")
        p.e(f"s_mul_i32 s{S_T1}, s{S_T1}, s{S_RS}")
        p.e(f"s_lshl_b32 s{S_T1}, s{S_T1}, 3")
        p.e(f"s_add_u32 s{S_T1}, s{S_T1}, s{S_T0}")
        p.e(f"v_add3_u32 v{VW1}, v{VW1}, v{LT3}, s{S_T1}")
        p.e(f"s_lshl_b32 s{S_RS16}, s{S_RS}, 4")
        p.e(f"s_lshl_b32 s{S_RS32}, s{S_RS}, 5")
        p.e(f"s_add_u32 s{S_RS48}, s{S_RS16}, s{S_RS32}")
        p.e(f"s_lshl_b32 s{S_T2}, s{S_RS}, 6")
        for q in range(8):
            p.e(f"s_add_u32 s{S_T1}, s{S_ROT}, {q}")
            p.e(f"s_and_b32 s{S_T1}, s{S_T1}, 7")
            p.e(f"s_lshl_b32 s{S_KX+q}, s{S_T1}, 7")
            p.e(f"s_mul_i32 s{S_KW+q}, s{S_T1}, s{S_T2}")
        p.e(f"s_cmp_eq_u32 s{S_ROLE}, 0")
        p.e("s_waitcnt lgkmcnt(0)")
        p.e(f"s_mov_b64 s[{SX}:{SX+1}], s[{P_X}:{P_X+1}]")
        p.e(f"s_cselect_b32 s{SW1}, s{P_WQKV}, s{P_W1}")
        p.e(f"s_cselect_b32 s{SW1+1}, s{P_WQKV+1}, s{P_W1+1}")
        for s, q in ((SW2, P_W2), (SWO, P_WO), (SWS, P_WS), (SOUT, P_OUT), (SPHI, P_WPHI)):
            p.e(f"s_mov_b64 s[{s}:{s+1}], s[{q}:{q+1}]")
        if c.stamps:
            p.e(f"v_writelane_b32 v{VST1}, s96, 63")
        p.e(f"s_cmp_lt_u32 s{S_WAVE}, 4")
        p.fence()
        p.e("s_cbranch_scc1 L_compute")

    def build_sel(self, p, vsel, t0, t1, t2):
        p.e(f"v_and_b32 v{t0}, 1, v0")
        p.e(f"v_lshlrev_b32 v{t0}, 4, v{t0}")
        p.e(f"v_mov_b32 v{t1}, 0x3f80")
        p.e(f"v_lshlrev_b32 v{t0}, v{t0}, v{t1}")
        p.e(f"v_bfe_u32 v{t1}, v0, 2, 1")
        p.e(f"v_lshrrev_b32 v{t2}, 5, v0")
        p.e(f"v_cmp_eq_u32 vcc, v{t1}, v{t2}")
        p.e(f"v_bfe_u32 v{t1}, v0, 3, 2")
        p.e(f"v_bfe_u32 v{t2}, v0, 1, 1")
        p.e(f"v_cndmask_b32 v{t0}, 0, v{t0}, vcc")
        p.e(f"v_lshl_or_b32 v{t1}, v{t1}, 1, v{t2}")
        for q in range(8):
            p.e(f"v_cmp_eq_u32 vcc, {q}, v{t1}")
            p.e(f"v_cndmask_b32 v{vsel+q}, 0, v{t0}, vcc")

    def nonce_issue(self, p, vn, vzero):
        p.e(f"global_load_dword v{vn}, v{vzero}, {sr(P_DBG,2)} sc1", tag="nonce")

    def nonce_get(self, p, vn, vzero):
        p.wait_vm("nonce")
        p.e(f"v_readfirstlane_b32 s{S_NONCE}, v{vn}")
        ok, lp = self.lab("nok"), self.lab("nlp")
        p.e(f"s_cmp_lg_u32 s{S_NONCE}, 0")
        p.fence()
        p.e(f"s_cbranch_scc1 {ok}")
        p.e(f"s_mov_b32 s{S_CNT}, 0")
        p.label(lp)
        p.e("s_sleep 4")
        p.raw(f"    global_load_dword v{vn}, v{vzero}, {sr(P_DBG,2)} sc1")
        p.raw("    s_waitcnt vmcnt(0)")
        p.e(f"v_readfirstlane_b32 s{S_NONCE}, v{vn}")
        p.e(f"s_add_u32 s{S_CNT}, s{S_CNT}, 1")
        p.e(f"s_cmp_ge_u32 s{S_CNT}, 20000")
        p.e(f"s_cbranch_scc1 {ok}")
        p.e(f"s_cmp_eq_u32 s{S_NONCE}, 0")
        p.e(f"s_cbranch_scc1 {lp}")
        p.label(ok)

    def poll_issue(self, p, vf, voff, soff, tag):
        p.e(f"buffer_load_dword v{vf}, v{voff}, {sr(SWS,4)}, s{soff} offen sc1", tag=tag)

    def poll_check(self, p, vf, voff, soff, tag):
        p.wait_vm(tag)
        ok, lp = self.lab("pok"), self.lab("plp")
        p.e(f"v_cmp_ne_u32 vcc, s{S_NONCE}, v{vf}")
        p.e("s_cmp_eq_u64 vcc, 0")
        p.fence()
        p.e(f"s_cbranch_scc1 {ok}")
        p.e(f"s_mov_b32 s{S_CNT}, 0")
        p.label(lp)
        p.e("s_sleep 2")
        p.raw(f"    buffer_load_dword v{vf}, v{voff}, {sr(SWS,4)}, s{soff} offen sc1")
        p.raw("    s_waitcnt vmcnt(0)")
        p.e(f"s_add_u32 s{S_CNT}, s{S_CNT}, 1")
        p.e(f"s_cmp_ge_u32 s{S_CNT}, 20000")
        p.e(f"s_cbranch_scc1 {ok}")
        p.e(f"v_cmp_ne_u32 vcc, s{S_NONCE}, v{vf}")
        p.e("s_cmp_lg_u64 vcc, 0")
        p.e(f"s_cbranch_scc1 {lp}")
        p.label(ok)

    def flag_store(self, p, vtmp, soff):
        p.wait_vm0()
        p.e(f"v_mov_b32 v{vtmp}, s{S_NONCE}")
        p.e("s_mov_b64 exec, 1")
        p.e(f"buffer_store_dword v{vtmp}, off, {sr(SWS,4)}, s{soff} sc1", tag="flag")
        p.e("s_mov_b64 exec, -1")

    def softmax(self, P, out, t):
        a = []
        a.append(f"v_max3_f32 v{t}, v{P}, v{P+1}, v{P+2}")
        a.append(f"v_max3_f32 v{t+1}, v{P+3}, v{P+4}, v{P+5}")
        a.append(f"v_max3_f32 v{t+2}, v{P+6}, v{P+7}, v{P+8}")
        a.append(f"v_max3_f32 v{t+3}, v{P+9}, v{P+10}, v{P+11}")
        a.append(f"v_max3_f32 v{t}, v{t}, v{P+12}, v{P+13}")
        a.append(f"v_max3_f32 v{t+1}, v{t+1}, v{P+14}, v{P+15}")
        a.append(f"v_max3_f32 v{t}, v{t}, v{t+2}, v{t+3}")
        a.append(f"v_max_f32 v{t}, v{t}, v{t+1}")
        a.append(f"v_mul_f32 v{t}, 0xbfb8aa3b, v{t}")
        for i in range(0, 16, 2):
            a.append(f"v_pk_fma_f32 {vr(P+i,2)}, {vr(P+i,2)}, {sr(S_L2E,2)}, {vr(t,2)} op_sel_hi:[1,1,0]")
        b = []
        for i in range(16):
            b.append(f"v_exp_f32 v{P+i}, v{P+i}")
        b.append(f"v_pk_add_f32 {vr(t,2)}, {vr(P,2)}, {vr(P+2,2)}")
        b.append(f"v_pk_add_f32 {vr(t+2,2)}, {vr(P+4,2)}, {vr(P+6,2)}")
        b.append(f"v_pk_add_f32 {vr(t,2)}, {vr(t,2)}, {vr(P+8,2)}")
        b.append(f"v_pk_add_f32 {vr(t+2,2)}, {vr(t+2,2)}, {vr(P+10,2)}")
        b.append(f"v_pk_add_f32 {vr(t,2)}, {vr(t,2)}, {vr(P+12,2)}")
        b.append(f"v_pk_add_f32 {vr(t+2,2)}, {vr(t+2,2)}, {vr(P+14,2)}")
        b.append(f"v_pk_add_f32 {vr(t,2)}, {vr(t,2)}, {vr(t+2,2)}")
        b.append(f"v_add_f32 v{t}, v{t}, v{t+1}")
        b.append(f"v_rcp_f32 v{t}, v{t}")
        for i in range(0, 16, 2):
            b.append(f"v_pk_mul_f32 {vr(P+i,2)}, {vr(P+i,2)}, {vr(t,2)} op_sel_hi:[1,0]")
        for i in range(8):
            b.append(f"v_cvt_pk_bf16_f32 v{out+i}, v{P+2*i}, v{P+2*i+1}")
        return a, b

    @staticmethod
    def cvt(dst, src, n):
        return [f"v_cvt_pk_bf16_f32 v{dst+i}, v{src+2*i}, v{src+2*i+1}" for i in range(n)]

    def compute(self, attn):
        c = self.c
        p = Prog("comp_attn" if attn else "comp_ffn")
        p.raw("L_comp_attn:" if attn else "L_comp_ffn:")
        VXA = 2
        VWA = 6
        VWB0, VWB1, VWH = 7, 8, 9
        VAA, VAA2, VBA, VBA2 = 10, 11, 12, 13
        VL16 = 14
        VT0, VT1, VT2, VT3 = 16, 17, 18, 19
        VZ, VN = 20, 21
        VPH, VSG = 22, 23
        VT4, VT5, VT6, VT7 = 24, 25, 26, 27
        VOUT = 28
        VG = 29
        ACC = 32
        FS = (96, 136)
        WPHI, SEL, CONES, GW = 176, 192, 200, 216
        WH = 120
        NC = 2 if attn else 3
        SF_A, SF_B, SST1, SST2, SST3, SGP = S_C, S_C + 1, S_C + 2, S_C + 3, S_C + 4, S_C + 5

        p.e(f"v_mov_b32 v{VZ}, 0")
        if attn:
            skip = self.lab("nw")
            p.e(f"s_lshl_b32 s{S_T0}, s2, 3")
            p.e(f"s_add_u32 s{S_T0}, s{S_T0}, s{S_WAVE}")
            p.e(f"s_cmp_lg_u32 s{S_T0}, 8")
            p.e(f"s_cbranch_scc1 {skip}")
            p.e(f"s_memrealtime s[94:95]")
            p.e("s_waitcnt lgkmcnt(0)")
            p.e(f"s_or_b32 s{S_T0}, s94, 1")
            p.e(f"v_mov_b32 v{VN}, s{S_T0}")
            p.e("s_mov_b64 exec, 1")
            p.raw(f"    global_store_dword v{VZ}, v{VN}, {sr(P_DBG,2)} sc1")
            p.e("s_mov_b64 exec, -1")
            p.label(skip)
        p.e(f"v_lshlrev_b32 v{VL16}, 4, v0")
        p.e(f"s_mov_b32 s{S_L2E}, 0x3fb8aa3b")
        p.e(f"s_mov_b32 s{S_L2E+1}, 0x3fb8aa3b")
        if attn:
            p.e(f"v_lshrrev_b32 v{VT0}, 5, v0")
            p.e(f"v_lshlrev_b32 v{VT0}, 4, v{VT0}")
            p.e(f"s_lshl_b32 s{S_T0}, s{S_UNIT}, 7")
            p.e(f"v_add_u32 v{VT0}, s{S_T0}, v{VT0}")
            for kk in range(4):
                p.e(f"global_load_dwordx4 {vr(GW+4*kk,4)}, v{VT0}, {sr(P_GATE,2)} offset:{32*kk}", tag="gw")
        p.e(f"v_and_b32 v{VT0}, 31, v0")
        p.e(f"v_lshrrev_b32 v{VT1}, 5, v0")
        p.e(f"v_bfe_u32 v{VT2}, v0, 1, 3")
        p.e(f"v_xor_b32 v{VT2}, v{VT2}, v{VT1}")
        p.e(f"v_lshlrev_b32 v{VT2}, 4, v{VT2}")
        p.e(f"v_lshl_or_b32 v{VXA}, v{VT0}, 7, v{VT2}")
        for kk in range(1, 4):
            p.e(f"v_xor_b32 v{VXA+kk}, {32*kk}, v{VXA}")
        p.e(f"v_bfe_u32 v{VT0}, v0, 2, 2")
        p.e(f"v_lshl_or_b32 v{VT0}, v{VT1}, 3, v{VT0}")
        p.e(f"v_and_b32 v{VT4}, 1, v0")
        p.e(f"v_bfe_u32 v{VT5}, v0, 1, 1")
        p.e(f"v_lshlrev_b32 v{VT1}, 4, v{VT4}")
        p.e(f"v_lshl_or_b32 v{VT1}, v{VT5}, 3, v{VT1}")
        p.e(f"v_bfe_u32 v{VT2}, v0, 4, 1")
        p.e(f"v_bfe_u32 v{VT3}, v0, 3, 1")
        p.e(f"v_lshlrev_b32 v{VT3}, 6, v{VT3}")
        if attn:
            p.e(f"s_lshl_b32 s{S_T0}, s{S_LW}, 5")
            p.e(f"v_add_u32 v{VT6}, s{S_T0}, v{VT1}")
            p.e(f"v_lshl_or_b32 v{VT7}, v{VT2}, 5, v{VT3}")
            p.e(f"v_xor_b32 v{VT6}, v{VT6}, v{VT7}")
            p.e(f"v_lshl_or_b32 v{VT6}, v{VT2}, 12, v{VT6}")
            p.e(f"v_lshl_add_u32 v{VT6}, v{VT0}, 7, v{VT6}")
            p.e(f"v_add_u32 v{VWA}, {RING}, v{VT6}")
        else:
            p.e(f"s_and_b32 s{S_T0}, s{S_LW}, 1")
            p.e(f"s_lshl_b32 s{S_T0}, s{S_T0}, 6")
            p.e(f"s_lshr_b32 s{S_T1}, s{S_LW}, 1")
            p.e(f"s_lshl_b32 s{S_T2}, s{S_T1}, 5")
            p.e(f"s_xor_b32 s{S_T0}, s{S_T0}, s{S_T2}")
            p.e(f"s_lshl_b32 s{S_T1}, s{S_T1}, 12")
            p.e(f"s_add_u32 s{S_T1}, s{S_T1}, {RING}")
            p.e(f"v_lshl_or_b32 v{VT6}, v{VT2}, 5, v{VT1}")
            p.e(f"v_xor_b32 v{VT6}, v{VT6}, v{VT3}")
            p.e(f"v_xor_b32 v{VT6}, s{S_T0}, v{VT6}")
            p.e(f"v_lshl_add_u32 v{VT6}, v{VT0}, 7, v{VT6}")
            p.e(f"v_add_u32 v{VWA}, s{S_T1}, v{VT6}")
        p.e(f"v_lshl_or_b32 v{VT6}, v{VT2}, 5, v{VT1}")
        p.e(f"v_xor_b32 v{VT7}, v{VT6}, v{VT3}")
        p.e(f"v_lshl_add_u32 v{VT7}, v{VT0}, 7, v{VT7}")
        p.e(f"v_add_u32 v{VWB0}, {RING}, v{VT7}")
        p.e(f"v_xor_b32 v{VWB1}, 64, v{VWB0}")
        p.e(f"v_lshl_add_u32 v{VT7}, v{VT0}, 6, v{VT6}")
        p.e(f"v_add_u32 v{VWH}, {RING+4096}, v{VT7}")
        p.e(f"s_lshr_b32 s{S_T0}, s{S_LW}, 1")
        p.e(f"s_lshl_b32 s{S_T0}, s{S_T0}, 12")
        p.e(f"v_add_u32 v{VAA}, s{S_T0}, v{VL16}")
        p.e(f"v_add_u32 v{VAA2}, 0x10000, v{VAA}")
        p.e(f"v_lshlrev_b32 v{VT6}, 5, v{VT4}")
        p.e(f"v_lshl_or_b32 v{VT6}, v{VT2}, 4, v{VT6}")
        p.e(f"v_lshl_or_b32 v{VT6}, v{VT5}, 3, v{VT6}")
        p.e(f"v_xor_b32 v{VT6}, v{VT6}, v{VT3}")
        p.e(f"s_and_b32 s{S_T0}, s{S_LW}, 1")
        p.e(f"s_lshl_b32 s{S_T0}, s{S_T0}, 6")
        p.e(f"v_xor_b32 v{VT6}, s{S_T0}, v{VT6}")
        p.e(f"v_lshl_add_u32 v{VT6}, v{VT0}, 7, v{VT6}")
        p.e(f"v_add_u32 v{VBA}, 8192, v{VT6}")
        p.e(f"v_add_u32 v{VBA2}, 0x10000, v{VBA}")
        p.e(f"v_and_b32 v{VT6}, 31, v0")
        p.e(f"v_lshrrev_b32 v{VT7}, 5, v0")
        p.e(f"v_lshlrev_b32 v{VT7}, 5, v{VT7}")
        p.e(f"v_lshl_or_b32 v{VOUT}, v{VT6}, 10, v{VT7}")
        p.e(f"s_lshl_b32 s{S_T1}, s{S_MM}, 1")
        p.e(f"s_lshr_b32 s{S_T2}, s{S_LW}, 1")
        p.e(f"s_add_u32 s{S_T1}, s{S_T1}, s{S_T2}")
        p.e(f"s_lshl_b32 s{S_T2}, s{S_T1}, 15")
        p.e(f"s_lshl_b32 s{S_T3}, s{S_NN}, 7")
        p.e(f"s_add_u32 s{S_T2}, s{S_T2}, s{S_T3}")
        p.e(f"s_add_u32 s{S_T2}, s{S_T2}, s{S_T0}")
        p.e(f"v_add_u32 v{VOUT}, s{S_T2}, v{VOUT}")
        p.e(f"s_lshr_b32 s{S_T2}, s{S_T1}, 2")
        p.e(f"s_lshl_b32 s{S_T2}, s{S_T2}, 12")
        p.e(f"s_and_b32 s{S_T3}, s{S_T1}, 3")
        p.e(f"s_lshl_b32 s{S_T3}, s{S_T3}, 7")
        p.e(f"s_add_u32 s{S_T2}, s{S_T2}, s{S_T3}")
        p.e(f"s_add_u32 s{S_T2}, s{S_T2}, {GP}")
        p.e(f"v_lshl_add_u32 v{VG}, v{VT6}, 2, s{S_T2}")
        p.e(f"s_lshl_b32 s{S_T1}, s{S_M}, 1")
        p.e(f"s_lshr_b32 s{S_T2}, s{S_LW}, 1")
        p.e(f"s_add_u32 s{S_T1}, s{S_T1}, s{S_T2}")
        p.e(f"s_lshl_b32 s{S_T1}, s{S_T1}, 7")
        p.e(f"s_lshl_b32 s{S_T2}, s{S_UNIT}, 3")
        p.e(f"s_and_b32 s{S_T3}, s{S_LW}, 1")
        p.e(f"s_lshl_b32 s{S_T3}, s{S_T3}, 2")
        p.e(f"s_add_u32 s{S_T1}, s{S_T1}, s{S_T2}")
        p.e(f"s_add_u32 s{S_T1}, s{S_T1}, s{S_T3}")
        p.e(f"s_add_u32 s{SF_B}, s{S_T1}, {F3 if attn else F2}")
        p.e(f"s_mul_i32 s{S_T4}, s{S_M}, {4*144*1024}")
        if attn:
            p.e(f"s_lshl_b32 s{S_T1}, s{S_UNIT}, 2")
            p.e(f"s_add_u32 s{S_T1}, s{S_T1}, s{S_LW}")
            p.e(f"s_lshl_b32 s{S_T2}, s{S_T1}, 7")
            p.e(f"s_lshl_b32 s{S_T3}, s{S_M}, 2")
            p.e(f"s_add_u32 s{S_T2}, s{S_T2}, s{S_T3}")
            p.e(f"s_add_u32 s{SF_A}, s{S_T2}, {FK}")
            p.e(f"s_lshl_b32 s{S_T1}, s{S_T1}, 4")
            p.e(f"s_add_u32 s{S_T1}, s{S_T1}, s{S_M}")
            p.e(f"s_mul_i32 s{S_T1}, s{S_T1}, 1152")
            p.e(f"s_add_u32 s{SST1}, s{S_T1}, {KVP}")
            p.e(f"s_mul_i32 s{S_T1}, s{S_LW}, {144*1024}")
            p.e(f"s_lshl_b32 s{S_T2}, s{S_UNIT}, 12")
            p.e(f"s_add_u32 s{S_T1}, s{S_T1}, s{S_T2}")
            p.e(f"s_add_u32 s{S_T1}, s{S_T1}, s{S_T4}")
            p.e(f"s_add_u32 s{SST2}, s{S_T1}, {112*1024}")
            p.e(f"s_lshl_b32 s{S_T1}, s{S_M}, 3")
            p.e(f"s_add_u32 s{S_T1}, s{S_T1}, s{S_UNIT}")
            p.e(f"s_lshl_b32 s{S_T1}, s{S_T1}, 9")
            p.e(f"s_lshl_b32 s{S_T2}, s{S_LW}, 7")
            p.e(f"s_add_u32 s{S_T1}, s{S_T1}, s{S_T2}")
            p.e(f"s_add_u32 s{SGP}, s{S_T1}, {GP}")
            p.e(f"s_sub_u32 s{S_T1}, s{S_UNIT}, s{S_ROT}")
            p.e(f"s_and_b32 s{S_T1}, s{S_T1}, 7")
            p.e(f"s_lshl_b32 s{SST3}, s{S_T1}, 14")
            p.e(f"v_lshlrev_b32 v{VT6}, 4, v{VT2}")
            p.e(f"v_lshl_or_b32 v{VT6}, v{VT5}, 3, v{VT6}")
            p.e(f"v_lshl_add_u32 v{VT6}, v{VT0}, 5, v{VT6}")
            p.e(f"v_add_u32 v{VPH}, {7*16384}, v{VT6}")
            p.e(f"s_lshl_b32 s{S_T1}, s{S_LW}, 9")
            p.e(f"v_add_u32 v15, s{S_T1}, v{VPH}")
            p.e(f"v_bfe_u32 v{VT6}, v0, 2, 1")
            p.e(f"v_cmp_eq_u32 vcc, 1, v{VT6}")
            p.e(f"v_mov_b32 v{VT7}, 0x80008000")
            p.e(f"v_bfe_u32 v{VT6}, v0, 4, 1")
            p.e(f"v_cndmask_b32 v{VSG}, 0, v{VT7}, vcc")
            p.e(f"v_cvt_f32_u32 v{CONES}, v{VT6}")
            self.build_sel(p, SEL, VT4, VT5, VT6)
            for i in range(1, 16):
                p.e(f"v_mov_b32 v{CONES+i}, v{CONES}")
        else:
            p.e(f"s_lshl_b32 s{S_T1}, s{S_M}, 7")
            p.e(f"s_lshl_b32 s{S_T2}, s{S_UNIT}, 4")
            p.e(f"s_lshl_b32 s{S_T3}, s{S_LW}, 2")
            p.e(f"s_add_u32 s{S_T1}, s{S_T1}, s{S_T2}")
            p.e(f"s_add_u32 s{S_T1}, s{S_T1}, s{S_T3}")
            p.e(f"s_add_u32 s{SF_A}, s{S_T1}, {F1}")
            p.e(f"s_lshl_b32 s{S_T1}, s{S_LW}, 5")
            p.e(f"s_add_u32 s{S_T1}, s{S_T1}, s{S_C1}")
            p.e(f"s_lshl_b32 s{S_T1}, s{S_T1}, 6")
            p.e(f"s_add_u32 s{SST1}, s{S_T1}, s{S_T4}")
            p.e(f"s_mul_i32 s{S_T1}, s{S_LW}, {144*1024}")
            p.e(f"s_add_u32 s{S_T1}, s{S_T1}, s{S_T4}")
            p.e(f"s_lshl_b32 s{S_T2}, s{S_C2}, 6")
            p.e(f"s_add_u32 s{SST2}, s{S_T1}, s{S_T2}")
            p.e(f"s_lshl_b32 s{S_T2}, s{S_C3}, 6")
            p.e(f"s_add_u32 s{SST3}, s{S_T1}, s{S_T2}")
        self.stamp(p, 100)

        def p1_reads(g):
            f = FS[g & 1]
            ch = g >> 1
            xs, ws = [], []
            for k2 in range(2):
                kk = 2 * (g & 1) + k2
                for rb in range(4):
                    xs.append(f"ds_read_b128 {vr(f+20*k2+4*rb,4)}, v{VXA+kk} offset:{(ch&3)*16384 + rb*4096}")
                for rd in range(2):
                    ws.append(f"ds_read_b64_tr_b16 {vr(f+20*k2+16+2*rd,2)}, v{VWA} offset:{(g&3)*8192 + (16*k2+4*rd)*128}")
            out = []
            for i in range(4):
                out += [xs[2 * i], xs[2 * i + 1], ws[i]]
            return out

        def p1_mfma(g):
            f = FS[g & 1]
            out = []
            for k2 in range(2):
                for rb in range(4):
                    out.append(mfma(ACC + 16 * rb, f + 20 * k2 + 16, f + 20 * k2 + 4 * rb, None if (g == 0 and k2 == 0) else ACC + 16 * rb))
            return out

        def p2_reads(i):
            f = FS[i & 1]
            ch = i >> 1
            out = []
            st = 4 + 4 * NC
            for k2 in range(2):
                kk = 2 * (i & 1) + k2
                out.append(f"ds_read_b128 {vr(f+st*k2,4)}, v{VXA+kk} offset:{(ch&3)*16384}")
                for cb in range(NC):
                    for rd in range(2):
                        if cb < 2:
                            out.append(f"ds_read_b64_tr_b16 {vr(f+st*k2+4+4*cb+2*rd,2)}, v{VWB0+cb} offset:{(i&3)*8192 + (16*k2+4*rd)*128}")
                        else:
                            out.append(f"ds_read_b64_tr_b16 {vr(f+st*k2+4+4*cb+2*rd,2)}, v{VWH} offset:{(i&3)*8192 + (16*k2+4*rd)*64}")
            return out

        def p2_mfma(i):
            f = FS[i & 1]
            st = 4 + 4 * NC
            out = []
            for k2 in range(2):
                for cb in range(NC):
                    out.append(mfma(ACC + 16 * cb, f + st * k2 + 4 + 4 * cb, f + st * k2, None if (i == 0 and k2 == 0) else ACC + 16 * cb))
            return out

        def ph2_reads(t):
            f = FS[t & 1]
            sl = t & 7
            va, vb = (VAA, VBA) if sl < 4 else (VAA2, VBA2)
            out = []
            for kb in range(4):
                out.append(f"ds_read_b128 {vr(f+8*kb,4)}, v{va} offset:{(sl&3)*16384 + kb*1024}")
                for rd in range(2):
                    out.append(f"ds_read_b64_tr_b16 {vr(f+8*kb+4+2*rd,2)}, v{vb} offset:{(sl&3)*16384 + (16*kb+4*rd)*128}")
            return out

        def ph2_mfma(t):
            f = FS[t & 1]
            acc = ACC if t < 28 else ACC + 16
            out = []
            for kb in range(4):
                first = (t in (0, 28)) and kb == 0
                out.append(mfma(acc, f + 8 * kb + 4, f + 8 * kb, None if first else acc))
            return out

        def bar(first=False):
            if not first:
                p.e("s_waitcnt lgkmcnt(0)")
            p.e("s_barrier")

        def emit(lst):
            for x in lst:
                p.e(x)

        def relu_store(t, src, so, off, tag):
            emit(self.cvt(t, src, 8))
            for i in range(8):
                p.e(f"v_pk_max_i16 v{t+i}, v{t+i}, 0")
            p.e(f"buffer_store_dwordx4 {vr(t,4)}, v{VL16}, {sr(SWS,4)}, s{so} offen offset:{off} sc1", tag=tag)
            p.e(f"buffer_store_dwordx4 {vr(t+4,4)}, v{VL16}, {sr(SWS,4)}, s{so} offen offset:{off+1024} sc1", tag=tag)

        WHT = 232
        for g in range(16):
            bar(g == 0)
            if g == 8:
                for kk in range(4):
                    p.e(f"v_add_u32 v{VXA+kk}, 0x10000, v{VXA+kk}")
            if g == 13:
                self.nonce_issue(p, VN, VZ)
            rd = p1_reads(g)
            if g == 0:
                emit(rd)
                if attn:
                    for h in range(4):
                        for r2 in range(2):
                            p.e(f"ds_read_b64_tr_b16 {vr(WPHI+4*h+2*r2,2)}, v{VPH} offset:{h*512 + r2*128}")
                    p.e("s_waitcnt lgkmcnt(8)")
                    for r2 in range(2):
                        p.e(f"ds_read_b64_tr_b16 {vr(VT4+2*r2,2)}, v15 offset:{r2*128}")
            else:
                emit(interleave(p1_mfma(g - 1), rd, 3))
            if g == 1 and attn:
                for i in range(16):
                    p.e(f"v_xor_b32 v{WPHI+i}, v{WPHI+i}, v{VSG}")
                for i in range(4):
                    p.e(f"v_xor_b32 v{VT4+i}, v{VT4+i}, v{VSG}")
        bar()
        self.stamp(p, 101)
        p.e(f"s_lshl_b32 s{S_T0}, s{S_LW}, 12")
        p.e(f"s_sub_u32 s{S_T0}, s{S_T0}, 0x10000")
        adj = [f"v_add_u32 v{VXA+kk}, s{S_T0}, v{VXA+kk}" for kk in range(4)]
        emit(interleave(p1_mfma(15), adj, 1))

        def start_p2():
            bar()
            emit(p2_reads(0))
        if attn:
            self.epi1_attn(p, ACC, VT4, SEL, CONES, GW, VXA, SST1, SGP, SST3, (VT0, VT1, VT2, VT3), start_p2)
        else:
            T = 176
            for rb in range(4):
                if rb == 3:
                    start_p2()
                if rb:
                    p.e(f"s_add_u32 s{SST1}, s{SST1}, {144*1024}")
                relu_store(T + 8 * rb, ACC + 16 * rb, SST1, 0, "h1")
        self.stamp(p, 102)
        for i in range(1, 16):
            bar()
            if i == 8:
                for kk in range(4):
                    p.e(f"v_add_u32 v{VXA+kk}, 0x10000, v{VXA+kk}")
            emit(interleave(p2_mfma(i - 1), p2_reads(i), 3))
            if i == (c.Y1a if attn else c.Y1f):
                self.stamp(p, 103)
                self.nonce_get(p, VN, VZ)
                self.flag_store(p, VT0, SF_A)
                self.stamp(p, 104)
        bar()
        self.stamp(p, 105)
        emit(p2_mfma(15))
        PHIQ = 200
        if attn:
            QB = 232
            for cb in range(2):
                emit(self.cvt(QB + 8 * cb, ACC + 16 * cb, 8))
            PB = (64, 80)
            p.e(mfma(PB[0], WPHI, QB, None))
            p.e(mfma(PB[1], WPHI + 4, QB + 4, None))
            for h in range(4):
                a, b = self.softmax(PB[h & 1], PHIQ + 8 * h, VT0)
                emit(a + b)
                if h + 2 < 4:
                    p.e(mfma(PB[h & 1], WPHI + 4 * (h + 2), QB + 4 * (h + 2), None))
        else:
            T = 176
            for cb in range(3):
                so, off = (SST2, 2048 * cb) if cb < 2 else (SST3, 0)
                relu_store(T + 8 * cb, ACC + 16 * cb, so, off, "h2")
        self.stamp(p, 106)
        GPV = 64
        for t in range(36):
            bar()
            if t == 0:
                self.stamp(p, 107)
                emit(ph2_reads(0))
                if attn:
                    KZ = (176, 184, 192, 232)
                    p.e(f"v_add_u32 v{VT0}, {RING}, v{VL16}")
                    p.e("s_waitcnt lgkmcnt(4)")
                    for h in range(4):
                        for u in range(2):
                            p.e(f"ds_read_b128 {vr(KZ[h]+4*u,4)}, v{VT0} offset:{h*2048+u*1024}")
                    p.e("s_waitcnt lgkmcnt(0)")
                    NB = (64, 80)
                    OP = 240

                    def nm(h):
                        p.e(mfma(NB[h & 1], KZ[h], PHIQ + 8 * h, None))
                        p.e(mfma(NB[h & 1], KZ[h] + 4, PHIQ + 8 * h + 4, NB[h & 1]))
                    nm(0)
                    nm(1)
                    for h in range(4):
                        N = NB[h & 1]
                        p.e(f"v_add_f32 v{VT2}, 0x358637bd, v{N+8}")
                        p.e(f"v_rcp_f32 v{VT2}, v{VT2}")
                        for i in range(0, 8, 2):
                            p.e(f"v_pk_mul_f32 {vr(N+i,2)}, {vr(N+i,2)}, {vr(VT2,2)} op_sel_hi:[1,0]")
                        emit(self.cvt(OP + 4 * h, N, 4))
                        p.e(f"buffer_store_dwordx4 {vr(OP+4*h,4)}, v{VL16}, {sr(SWS,4)}, s{SST2} offen offset:{h*1024} sc1", tag="o")
                        if h + 2 < 4:
                            nm(h + 2)
                    self.stamp(p, 108)
            else:
                emit(interleave(ph2_mfma(t - 1), ph2_reads(t), 3))
            if t == c.Y2:
                self.stamp(p, 109)
                self.flag_store(p, VT0, SF_B)
                self.stamp(p, 110)
            if t == 33:
                for hg in range(8):
                    p.e(f"buffer_load_dword v{GPV+hg}, v{VG}, {sr(SWS,4)}, 0 offen offset:{hg*512} sc1", tag="gp")
        p.e("s_waitcnt lgkmcnt(0)")
        emit(ph2_mfma(35))
        self.stamp(p, 111)
        p.wait_vm("gp")
        for i in range(4):
            p.e(f"v_add_f32 v{GPV+i}, v{GPV+i}, v{GPV+4+i}")
        p.e(f"v_add_f32 v{GPV}, v{GPV}, v{GPV+1}")
        p.e(f"v_add_f32 v{GPV+2}, v{GPV+2}, v{GPV+3}")
        p.e(f"v_add_f32 v{GPV}, v{GPV}, v{GPV+2}")
        p.e(f"v_mul_f32 v{GPV}, 0xbfb8aa3b, v{GPV}")
        p.e(f"v_exp_f32 v{GPV}, v{GPV}")
        p.e(f"v_add_f32 v{GPV}, 1.0, v{GPV}")
        p.e(f"v_rcp_f32 v{GPV}, v{GPV}")
        p.e(f"v_sub_f32 v{GPV+2}, 1.0, v{GPV}")
        for i in range(0, 16, 2):
            p.e(f"v_pk_mul_f32 {vr(ACC+i,2)}, {vr(ACC+i,2)}, {vr(GPV+2,2)} op_sel_hi:[1,0]")
        for i in range(0, 16, 2):
            p.e(f"v_pk_fma_f32 {vr(ACC+i,2)}, {vr(ACC+16+i,2)}, {vr(GPV,2)}, {vr(ACC+i,2)} op_sel_hi:[1,0,1]")
        emit(self.cvt(80, ACC, 8))
        p.e(f"buffer_store_dwordx4 {vr(80,4)}, v{VOUT}, {sr(SOUT,4)}, 0 offen", tag="out")
        p.e(f"buffer_store_dwordx4 {vr(84,4)}, v{VOUT}, {sr(SOUT,4)}, 0 offen offset:16", tag="out")
        if c.dbgtime:
            p.wait_vm0()
            p.e("s_memrealtime s[98:99]")
            p.e(f"s_mul_i32 s{S_T0}, s2, 1772")
            p.e(f"s_lshr_b32 s{S_T0}, s{S_T0}, 16")
            p.e(f"s_mul_i32 s{S_T1}, s{S_T0}, 37")
            p.e(f"s_sub_u32 s{S_T1}, s2, s{S_T1}")
            p.e(f"s_or_b32 s{S_T1}, s{S_T1}, s{S_WAVE}")
            p.e(f"s_lshl_b32 s{S_T0}, s{S_T0}, 3")
            p.e("s_waitcnt lgkmcnt(0)")
            p.e("v_mov_b32 v80, s96")
            p.e("v_mov_b32 v81, s98")
            p.e(f"v_mov_b32 v82, s{S_T0}")
            sk = self.lab("dt")
            p.e(f"s_cmp_lg_u32 s{S_T1}, 0")
            p.fence()
            p.e(f"s_cbranch_scc1 {sk}")
            p.e("s_mov_b64 exec, 1")
            p.e(f"global_store_dwordx2 v82, v[80:81], {sr(P_DBG,2)} offset:8")
            p.label(sk)
        if c.stamps:
            self.stamp(p, 112)
            p.wait_vm0()
            self.stamp(p, 113)
            self.stamps_out(p)
        p.e("s_endpgm")
        return p

    def epi1_attn(self, p, ACC, WH, SEL, CONES, GW, VXA, SKV, SGP, SGCH, T, start_p2):
        def emit(lst):
            for x in lst:
                p.e(x)
        KVB = 136
        PHI = 168
        VNP = 248
        PTP = 128
        KV = 232
        PB = (32, 48)
        VN, PT = 64, 80
        XG = 120
        GX = 96
        for kk in range(4):
            p.e(f"v_add_u32 v{T[kk]}, s{SGCH}, v{VXA+kk}")
            p.e(f"ds_read_b128 {vr(GX+4*kk,4)}, v{T[kk]}")
        p.e(f"v_lshlrev_b32 v{XG}, 2, v0")
        for rb in range(4):
            emit(self.cvt(KVB + 8 * rb, ACC + 16 * rb, 8))
            if rb == 1:
                p.e(mfma(PB[0], WH, KVB, None))
                p.e(mfma(PB[1], WH, KVB + 8, None))
        p.wait_vm("gw")
        p.e("s_waitcnt lgkmcnt(0)")
        for kk in range(4):
            p.e(mfma(PT, GW + 4 * kk, GX + 4 * kk, None if kk == 0 else PT))
        p.e(mfma(VN, KVB + 4, SEL, CONES))
        a, b = self.softmax(PB[0], PHI, T[0])
        emit(a)
        p.e("s_mov_b32 exec_hi, 0")
        p.e(f"buffer_store_dword v{PT}, v{XG}, {sr(SWS,4)}, s{SGP} offen sc1", tag="gps")
        p.e("s_mov_b64 exec, -1")
        emit(b)
        for rb in range(4):
            p.e(mfma(PT, PHI, SEL, None))
            p.e(mfma(PT, PHI + 4, SEL + 4, PT))
            if rb + 2 < 4:
                p.e(mfma(PB[rb & 1], WH, KVB + 8 * (rb + 2), None))
            emit(self.cvt(VNP, VN, 8))
            if rb + 1 < 4:
                p.e(mfma(VN, KVB + 8 * (rb + 1) + 4, SEL, CONES))
                a, b = self.softmax(PB[(rb + 1) & 1], PHI, T[0])
                emit(a)
            else:
                start_p2()
                p.e(f"v_lshrrev_b32 v{T[0]}, 5, v0")
                p.e(f"v_and_b32 v{T[1]}, 31, v0")
                p.e(f"v_mad_u32_u24 v{T[0]}, v{T[0]}, 17, v{T[1]}")
                p.e(f"v_lshlrev_b32 v{T[0]}, 4, v{T[0]}")
            emit(self.cvt(PTP, PT, 8))
            p.e(mfma(KV, PTP, VNP, None if rb == 0 else KV))
            p.e(mfma(KV, PTP + 4, VNP + 4, KV))
            if rb + 1 < 4:
                emit(b)
        emit(self.cvt(PTP, KV, 8))
        p.e("s_mov_b32 exec_lo, 0x1ffff")
        p.e("s_mov_b32 exec_hi, 0x1ffff")
        p.e(f"buffer_store_dwordx4 {vr(PTP,4)}, v{T[0]}, {sr(SWS,4)}, s{SKV} offen sc1", tag="kvs")
        p.e(f"buffer_store_dwordx4 {vr(PTP+4,4)}, v{T[0]}, {sr(SWS,4)}, s{SKV} offen offset:{34*16} sc1", tag="kvs")
        p.e("s_mov_b64 exec, -1")

    def dma(self, p, v, srd, soff, m0s, m0c, tag, extra="", pre=None):
        p.e(f"s_add_u32 m0, s{m0s}, {m0c}")
        if pre:
            p.e(pre)
        p.e(f"buffer_load_dwordx4 v{v}, {sr(srd,4)}, {soff} offen {extra} lds".replace("  ", " "), tag=tag)

    def xhalf(self, p, hf):
        q = hf >> 1
        for i in range(2):
            ro = 64 * (hf & 1) + 32 * i
            self.dma(p, VX, SX, f"s{S_T0}", S_WL1K, q * 16384 + ro * 128, ("x", hf), pre=f"s_add_u32 s{S_T0}, s{S_KX+q}, {ro*1024}")

    def w1stage(self, p, g):
        q = g >> 1
        slot = RING + (g & 3) * 8192
        for i in range(2):
            ro = 2 * (g & 1) + i
            src = ("0", f"s{S_RS16}", f"s{S_RS32}", f"s{S_RS48}")[ro]
            self.dma(p, VW1, SW1, f"s{S_T0}", S_W1L, slot + i * 2048, ("w", g), pre=f"s_add_u32 s{S_T0}, s{S_KW+q}, {src}")

    VZ, VN, VF, VFO32, VFO16, VKV, VPF, VPF2 = 12, 13, 14, 15, 16, 17, 18, 19
    LSEL = 192
    S_WL2K, S_AB, S_FO1, S_FO2, S_FO3, S_FOK, S_KVB, S_WL512 = 25, 18, 20, 21, 22, 23, 26, 16

    def loader_common(self, p):
        c = self.c
        self.stamp(p, 114)
        self.xhalf(p, 0)
        self.xhalf(p, 1)
        self.w1stage(p, 0)
        p.e(f"s_lshl_b32 s{self.S_WL512}, s{S_LW}, 9")
        p.e(f"v_lshlrev_b32 v{VA}, 4, v0")
        p.e(f"s_lshl_b32 s{S_T0}, s{S_UNIT}, 11")
        p.e(f"s_add_u32 s{S_T0}, s{S_T0}, s{self.S_WL512}")
        self.dma(p, VA, SPHI, f"s{S_T0}", self.S_WL512, 7 * 16384, ("w", 0), pre="s_mov_b32 exec_hi, 0")
        p.e("s_mov_b64 exec, -1")
        self.xhalf(p, 2)
        self.w1stage(p, 1)
        self.stamp(p, 115)
        VZ, VFO32, VFO16, VKV, VPF, VPF2 = self.VZ, self.VFO32, self.VFO16, self.VKV, self.VPF, self.VPF2
        p.e(f"v_mov_b32 v{VZ}, 0")
        p.e(f"s_lshl_b32 s{self.S_WL2K}, s{S_LW}, 11")
        p.e(f"s_lshl_b32 s{S_T2}, s{S_UNIT}, 7")
        p.e(f"s_lshl_b32 s{S_T3}, s{S_C2}, 1")
        p.e(f"s_lshl_b32 s{S_T4}, s{S_C3}, 1")
        p.e(f"s_cmp_eq_u32 s{S_ROLE}, 0")
        p.e(f"s_cselect_b32 s{S_T3}, s{S_T2}, s{S_T3}")
        p.e(f"s_cselect_b32 s{S_T4}, s{S_T2}, s{S_T4}")
        p.e(f"s_mul_i32 s{S_T1}, s{S_LW}, s{S_RS}")
        p.e(f"s_lshl_b32 s{S_T1}, s{S_T1}, 3")
        p.e(f"s_add_u32 s{S_T2}, s{S_T3}, s{S_T1}")
        p.e(f"v_add3_u32 v{VW2}, v{LT2}, v{LT3}, s{S_T2}")
        p.e(f"v_lshrrev_b32 v{VW3}, 2, v0")
        p.e(f"v_mul_u32_u24 v{VW3}, s{S_RS}, v{VW3}")
        p.e(f"v_and_b32 v{LT3}, 3, v0")
        p.e(f"v_lshl_add_u32 v{VW3}, v{LT3}, 4, v{VW3}")
        p.e(f"s_add_u32 s{S_T2}, s{S_T4}, s{S_T1}")
        p.e(f"v_add_u32 v{VW3}, s{S_T2}, v{VW3}")
        p.e(f"v_and_b32 v{VFO16}, 15, v0")
        p.e(f"s_and_b32 s{S_T1}, s{S_M}, 7")
        p.e(f"s_lshl_b32 s{S_T1}, s{S_T1}, 6")
        p.e(f"s_lshl_b32 s{S_T2}, s{S_LW}, 4")
        p.e(f"s_add_u32 s{S_T1}, s{S_T1}, s{S_T2}")
        p.e(f"v_add_u32 v{VPF}, s{S_T1}, v{VFO16}")
        p.e(f"v_mul_u32_u24 v{VPF}, s{S_RS}, v{VPF}")
        p.e(f"v_mov_b32 v{LT1}, s{S_T3}")
        p.e(f"v_mov_b32 v{LT3}, s{S_T4}")
        p.e(f"v_cmp_gt_u32 vcc, 16, v0")
        p.e(f"v_lshlrev_b32 v{VFO16}, 2, v{VFO16}")
        p.e(f"v_and_b32 v{VFO32}, 31, v0")
        p.e(f"v_cndmask_b32 v{LT1}, v{LT3}, v{LT1}, vcc")
        p.e(f"v_add_u32 v{VPF}, v{VPF}, v{LT1}")
        p.e(f"v_lshlrev_b32 v{VFO32}, 2, v{VFO32}")
        p.e(f"s_lshl_b32 s{S_T1}, s{S_M}, 3")
        p.e(f"s_add_u32 s{S_T1}, s{S_T1}, s{S_UNIT}")
        p.e(f"s_lshl_b32 s{S_T1}, s{S_T1}, 2")
        p.e(f"s_add_u32 s{S_T1}, s{S_T1}, s{S_LW}")
        p.e(f"s_lshl_b32 s{S_T1}, s{S_T1}, 7")
        p.e(f"v_lshl_add_u32 v{VPF2}, v0, 16, s{S_T1}")
        p.e(f"v_lshl_or_b32 v{VB}, v{LT0}, 10, v{LT2}")
        p.e(f"s_lshl_b32 s{S_T1}, s{S_NN}, 7")
        p.e(f"s_lshl_b32 s{S_T2}, s{S_LW}, 14")
        p.e(f"s_add_u32 s{S_T1}, s{S_T1}, s{S_T2}")
        p.e(f"v_add_u32 v{VB}, s{S_T1}, v{VB}")
        p.e(f"s_lshl_b32 s{S_T1}, s{S_MM}, 1")
        p.e(f"s_lshr_b32 s{S_T2}, s{S_LW}, 1")
        p.e(f"s_add_u32 s{S_T1}, s{S_T1}, s{S_T2}")
        p.e(f"s_mul_i32 s{S_T1}, s{S_T1}, {144*1024}")
        p.e(f"s_and_b32 s{S_T2}, s{S_LW}, 1")
        p.e(f"s_lshl_b32 s{S_T2}, s{S_T2}, 11")
        p.e(f"s_add_u32 s{self.S_AB}, s{S_T1}, s{S_T2}")
        p.e(f"s_lshr_b32 s{S_T1}, s{S_MM}, 1")
        p.e(f"s_lshl_b32 s{S_T1}, s{S_T1}, 7")
        p.e(f"s_add_u32 s{self.S_FO1}, s{S_T1}, {F1}")
        p.e(f"s_lshl_b32 s{S_T1}, s{S_MM}, 7")
        p.e(f"s_add_u32 s{self.S_FO2}, s{S_T1}, {F2}")
        p.e(f"s_add_u32 s{self.S_FO3}, s{S_T1}, {F3}")
        p.e(f"s_lshl_b32 s{S_T1}, s{S_UNIT}, 2")
        p.e(f"s_add_u32 s{S_T1}, s{S_T1}, s{S_LW}")
        p.e(f"s_lshl_b32 s{S_T2}, s{S_T1}, 7")
        p.e(f"s_add_u32 s{self.S_FOK}, s{S_T2}, {FK}")
        p.e(f"s_mul_i32 s{S_T1}, s{S_T1}, {16*1152}")
        p.e(f"s_add_u32 s{self.S_KVB}, s{S_T1}, {KVP}")
        p.e(f"v_lshrrev_b32 v{LT0}, 5, v0")
        p.e(f"v_and_b32 v{LT1}, 31, v0")
        p.e(f"v_min_u32 v{LT1}, 16, v{LT1}")
        p.e(f"v_mad_u32_u24 v{VKV}, v{LT0}, 17, v{LT1}")
        p.e(f"v_lshlrev_b32 v{VKV}, 4, v{VKV}")
        self.build_sel(p, self.LSEL, LT0, LT1, LT2)
        self.stamp(p, 116)
        for g in range(2, 4):
            self.xhalf(p, g + 1)
            self.w1stage(p, g)
        self.stamp(p, 117)
        for b in range(13):
            p.wait_vm([("w", b), ("x", 2 * (b >> 1)), ("x", 2 * (b >> 1) + 1)])
            p.e("s_barrier")
            self.stamp(p, b)
            if b >= 1:
                g = b + 3
                if g + 1 < 16:
                    self.xhalf(p, g + 1)
                self.w1stage(p, g)
        p.e(f"s_cmp_eq_u32 s{S_ROLE}, 0")
        p.fence()
        p.e("s_cbranch_scc0 L_load_ffn")

    def loader_role(self, attn, base):
        c = self.c
        p = Prog("load_attn" if attn else "load_ffn")
        p.vm = list(base.vm)
        p.done = set(getattr(base, "done", set()))
        p.nbar = base.nbar
        if not attn:
            p.raw("L_load_ffn:")
        VZ, VN, VF, VFO32, VFO16, VKV, VPF, VPF2 = self.VZ, self.VN, self.VF, self.VFO32, self.VFO16, self.VKV, self.VPF, self.VPF2
        SEL = self.LSEL
        S_WL2K, S_AB, S_FO1, S_FO2, S_FO3, S_FOK, S_KVB, S_WL512 = self.S_WL2K, self.S_AB, self.S_FO1, self.S_FO2, self.S_FO3, self.S_FOK, self.S_KVB, self.S_WL512

        def w2stage(i):
            q = i >> 1
            slot = RING + (i & 3) * 8192
            src = f"s{S_RS32}" if (i & 1) else "0"
            self.dma(p, VW2, SW1, f"s{S_T0}", S_WL1K, slot, ("w2", i), pre=f"s_add_u32 s{S_T0}, s{S_KW+q}, {src}")
            if not attn:
                self.dma(p, VW3, SW1, f"s{S_T0}", S_WL512, slot + 4096, ("w2", i), pre="s_mov_b32 exec_hi, 0")
                p.e("s_mov_b64 exec, -1")

        def a_part(t):
            ln = LINE_ORDER[t]
            self.dma(p, VA, SWS, f"s{S_T0}", S_WL2K, (t & 7) * 16384, ("a", t), "sc1", pre=f"s_add_u32 s{S_T0}, s{S_AB}, {ln*4096}")
            p.e(f"buffer_load_dwordx4 v{VA}, {sr(SWS,4)}, s{S_T0} offen offset:1024 sc1 lds", tag=("a", t))

        def b_part(t):
            ln = LINE_ORDER[t]
            srd, row0 = (SW2, 64 * ln) if ln < 28 else (SWO, 64 * (ln - 28))
            for i in range(2):
                self.dma(p, VB, srd, f"s{S_T0}", S_WL2K, (t & 7) * 16384 + 8192 + i * 1024, ("b", t), pre=f"s_mov_b32 s{S_T0}, {(row0 + 8*i)*1024}")

        for b in range(13, 17):
            if b < 16:
                p.wait_vm([("w", b), ("x", 2 * (b >> 1)), ("x", 2 * (b >> 1) + 1)])
            p.e("s_barrier")
            self.stamp(p, b)
            w2stage(b - 13)
            if b == 13:
                if c.p2_prefetch:
                    p.e("s_mov_b32 exec_hi, 0")
                    p.e(f"buffer_load_dword v{VF}, v{VPF}, {sr(SW1,4)}, 0 offen", tag="pf")
                    p.e("s_mov_b64 exec, -1")
                self.nonce_issue(p, VN, VZ)
            if b == 16 and attn and c.w2_prefetch:
                p.e(f"buffer_load_dword v{VF}, v{VPF2}, {sr(SW2,4)}, 0 offen", tag="pf")
                p.e(f"buffer_load_dword v{VF}, v{VPF2}, {sr(SWO,4)}, 0 offen", tag="pf")
        self.nonce_get(p, VN, VZ)
        nb = na = 0
        f1ok = False
        Bstart = c.Bstart_a if attn else c.Bstart_f
        F1chk = c.F1chk_a if attn else c.F1chk_f
        nA0 = 8 if attn else c.Alead
        for i in range(17):
            if i < 16:
                p.wait_vm([("w2", i)])
            p.e("s_barrier")
            self.stamp(p, 17 + i)
            if 1 <= i <= 12:
                w2stage(i + 3)
            nfree = (i - 2) // 2 + 1 if i >= 2 else 0
            if i == F1chk - 2:
                self.poll_issue(p, VF, VFO32, S_FO1, "f1")
            if i == F1chk:
                self.stamp(p, 118)
                self.poll_check(p, VF, VFO32, S_FO1, "f1")
                self.stamp(p, 119)
                f1ok = True
            budget = 2 if i < 16 else 99
            while budget > 0:
                if f1ok and na < min(nfree, nA0) and na <= nb:
                    a_part(na); na += 1
                elif i >= Bstart and nb < nfree:
                    b_part(nb); nb += 1
                elif f1ok and na < min(nfree, nA0):
                    a_part(na); na += 1
                else:
                    break
                budget -= 1
            if attn and i == 14:
                self.poll_issue(p, VF, VFO16, S_FOK, "fk")
        assert nb == 8 and na == nA0, (nb, na)
        if attn:
            self.stamp(p, 120)
            self.poll_check(p, VF, VFO16, S_FOK, "fk")
            self.stamp(p, 121)
            KVL = 64
            ACC = 32
            for m in range(16):
                if m:
                    p.e(f"s_add_u32 s{S_KVB}, s{S_KVB}, 1152")
                for u in range(2):
                    p.e(f"buffer_load_dwordx4 {vr(KVL+8*m+4*u,4)}, v{VKV}, {sr(SWS,4)}, s{S_KVB} offen offset:{u*34*16} sc1", tag=("kv", m))
                if m >= 6:
                    mm_ = m - 6
                    p.wait_vm([("kv", mm_)])
                    for u in range(2):
                        p.e(mfma(ACC, SEL + 4 * u, KVL + 8 * mm_ + 4 * u, None if (mm_ == 0 and u == 0) else ACC))
            for m in range(10, 16):
                p.wait_vm([("kv", m)])
                for u in range(2):
                    p.e(mfma(ACC, SEL + 4 * u, KVL + 8 * m + 4 * u, ACC))
            p.e(f"s_add_u32 s{S_T0}, s{S_WL2K}, {RING}")
            p.e(f"v_add_u32 v{LT0}, s{S_T0}, v{VA}")
            for x in self.cvt(48, ACC, 8):
                p.e(x)
            p.e(f"ds_write_b128 v{LT0}, {vr(48,4)}")
            p.e(f"ds_write_b128 v{LT0}, {vr(52,4)} offset:1024")
            p.e("s_waitcnt lgkmcnt(0)")
            self.stamp(p, 122)
        nextA = nA0
        for t in range(36):
            p.wait_vm([("a", t), ("b", t)])
            p.e("s_barrier")
            self.stamp(p, 34 + t)
            while nextA < 36 and nextA <= t + c.Alead:
                if nextA == 16:
                    self.stamp(p, 110)
                    self.poll_check(p, VF, VFO16, S_FO2, "f2")
                    self.stamp(p, 111)
                if nextA == 28:
                    self.stamp(p, 112)
                    self.poll_check(p, VF, VFO16, S_FO3, "f3")
                    self.stamp(p, 113)
                a_part(nextA)
                nextA += 1
            if t >= 1 and t + 7 < 36:
                b_part(t + 7)
            if t + c.Alead == 16 - 3:
                self.poll_issue(p, VF, VFO16, S_FO2, "f2")
            if t + c.Alead == 28 - 3:
                self.poll_issue(p, VF, VFO16, S_FO3, "f3")
        self.stamps_out(p)
        p.e("s_endpgm")
        return p

    def build(self):
        head = Prog("head")
        self.prologue(head)
        self.loader_common(head)
        la = self.loader_role(True, head)
        lf = self.loader_role(False, head)
        disp = Prog("disp")
        disp.raw("L_exit:")
        disp.e("s_endpgm")
        disp.raw("L_compute:")
        disp.e(f"s_cmp_eq_u32 s{S_ROLE}, 0")
        disp.e("s_cbranch_scc1 L_comp_attn")
        cf = self.compute(False)
        ca = self.compute(True)
        nb = {q.name: q.nbar for q in (la, lf, cf, ca)}
        assert len(set(nb.values())) == 1, nb
        hdr = open("gated_mix__linear_kernel_hedgehog__dense_activation_relu__prompt.s.ref").read().split("; Override")[0]
        out = [hdr.rstrip("\n"),
               "; @launch grid=(256,1,1) block=(512,1,1) lds=163840",
               '.amdgcn_target "amdgcn-amd-amdhsa--gfx950"', ".text", f".globl {KNAME}", ".p2align 8",
               f".type {KNAME},@function", f"{KNAME}:"]
        out += [head.text(), la.text(), ".p2align 6", lf.text(), ".p2align 6", disp.text(), cf.text(), ".p2align 6", ca.text(), ".p2align 6"]
        out.append("L_code_end:")
        out.append('.section .rodata,"a"\n.p2align 6')
        out.append(f".amdhsa_kernel {KNAME}")
        out.append("  .amdhsa_next_free_vgpr 256\n  .amdhsa_next_free_sgpr 102\n  .amdhsa_accum_offset 256\n  .amdhsa_group_segment_fixed_size 0\n  .amdhsa_kernarg_size 88\n  .amdhsa_user_sgpr_count 2\n  .amdhsa_user_sgpr_kernarg_segment_ptr 1\n  .amdhsa_system_sgpr_workgroup_id_x 1")
        out.append(".end_amdhsa_kernel")
        info = {q.name: (len(q.lines), q.nops) for q in (head, la, lf, cf, ca)}
        return "\n".join(out) + "\n", info


def generate(path, **kw):
    cfg = Cfg()
    for k, v in kw.items():
        assert hasattr(cfg, k), k
        setattr(cfg, k, v)
    txt, info = G(cfg).build()
    open(path, "w").write(txt)
    return info


if __name__ == "__main__":
    path = sys.argv[1] if len(sys.argv) > 1 else "gated_mix__linear_kernel_hedgehog__dense_activation_relu__prompt.s"
    kw = {}
    for a in sys.argv[2:]:
        k, v = a.split("=")
        kw[k] = int(v)
    print(generate(path, **kw))
```
